```python
import torch

def _softmax(x, axis=-1):
    return torch.softmax(x, dim=axis)
def _gelu(x):
    return torch.nn.functional.gelu(x, approximate="tanh")
def _silu(x):
    return torch.nn.functional.silu(x)
def _sigmoid(x):
    return torch.sigmoid(x)
def _layernorm(x, axis=-1, eps=1e-5):
    m = x.mean(dim=axis, keepdim=True)
    v = x.var(dim=axis, keepdim=True, unbiased=False)
    return (x - m) / torch.sqrt(v + eps)
def _scatter_add(tgt, idx, src, axis=0):
    return tgt.clone().index_add_(axis, idx, src)
def _segment_sum(src, seg, n):
    out = torch.zeros((n,) + src.shape[1:], dtype=src.dtype)
    return out.index_add_(0, seg, src)
def _pad(x, pw):
    flat = tuple(v for pair in reversed(pw) for v in pair)
    return torch.nn.functional.pad(x, flat)

kernel_name = 'parallel_sum__mha_block__dense_activation_gelu__prompt'

def setup_inputs():

    _w = (lambda a: (lambda t: t.to(torch.bfloat16) if t.is_floating_point() else t)(torch.as_tensor(a)))
    def _A_setup():
        B, S, D, H = 1, 2048, 640, 32
        return {
            "x": _w((lambda *s: torch.randn(*s, dtype=torch.bfloat16) * 0.05)(B, S, D)),
            "wqkv": _w((lambda *s: torch.randn(*s, dtype=torch.bfloat16) * 0.05)(D, 3 * D)),
            "wo": _w((lambda *s: torch.randn(*s, dtype=torch.bfloat16) * 0.05)(D, D)),
        }
    _A_in = _A_setup()

    def _B_setup():
        B, S, D, F = 1, 2048, 640, 1728
        return {
            "x": _w((lambda *s: torch.randn(*s, dtype=torch.bfloat16) * 0.05)(B, S, D)),
            "w1": _w((lambda *s: torch.randn(*s, dtype=torch.bfloat16) * 1.6)(D, F) * (D ** -0.5)),
            "b1": _w((lambda *s: torch.randn(*s, dtype=torch.bfloat16) * 1.6)(F) * 0.01),
            "w2": _w((lambda *s: torch.randn(*s, dtype=torch.bfloat16) * 0.2)(F, D) * (F ** -0.5)),
            "b2": _w((lambda *s: torch.randn(*s, dtype=torch.bfloat16) * 0.2)(D) * 0.01),
        }
    _B_in = _B_setup()

    return {
        "A_x": _A_in["x"],
        "A_wqkv": _A_in["wqkv"],
        "A_wo": _A_in["wo"],
        "B_x": _B_in["x"],
        "B_w1": _B_in["w1"],
        "B_b1": _B_in["b1"],
        "B_w2": _B_in["w2"],
        "B_b2": _B_in["b2"],
    }

def reference(A_x, A_wqkv, A_wo, B_x, B_w1, B_b1, B_w2, B_b2):
    def _A_ref(x, wqkv, wo):
        B, S, D = x.shape
        H = 32
        Dh = D // H
        qkv = (lambda x, *d: x.permute(*d))((x @ wqkv).reshape(B, S, 3, H, Dh), 2, 0, 3, 1, 4)
        q, k, v = qkv[0], qkv[1], qkv[2]
        scores = torch.einsum("bhqd,bhkd->bhqk", q, k) * (Dh ** -0.5)
        p = _softmax(scores, axis=-1)
        o = torch.einsum("bhqk,bhkd->bhqd", p, v)
        return (lambda x, *d: x.permute(*d))(o, 0, 2, 1, 3).reshape(B, S, D) @ wo

    def _B_ref(x, w1, b1, w2, b2):
        h = torch.einsum("bsd,df->bsf", x, w1) + b1
        h = _gelu(h)
        return torch.einsum("bsf,fd->bsd", h, w2) + b2

    x = A_x
    xn = _layernorm(x, axis=-1)
    return x + _A_ref(xn, A_wqkv, A_wo) + _B_ref(xn, B_w1, B_b1, B_w2, B_b2)
```

```python
class Asm:
    def __init__(self):
        self.L = []
        self.vm_issued = 0
        self.lg_issued = 0
    def __call__(self, s):
        for line in s.strip("\n").split("\n"):
            line = line.strip()
            if line:
                self.L.append("    " + line)
    def label(self, l):
        self.L.append(l + ":")
    def raw(self, s):
        self.L.append(s)
    def c(self, s):
        self.L.append("    ; " + s)
    def vm(self, s):
        self(s)
        self.vm_issued += 1
        return self.vm_issued
    def wait_vm(self, tok):
        n = self.vm_issued - tok
        assert n >= 0
        self(f"s_waitcnt vmcnt({min(n, 63)})")
    def lg(self, s):
        self(s)
        self.lg_issued += 1
        return self.lg_issued
    def wait_lg(self, tok):
        n = self.lg_issued - tok
        assert n >= 0
        self(f"s_waitcnt lgkmcnt({min(n, 15)})")
    TS = False
    def ts_start(self):
        if Asm.TS:
            self("s_memrealtime s[96:97]")
    def ts_mark(self, i):
        if Asm.TS:
            import os
            self(f"{'s_memtime' if os.environ.get('TSCYC') else 's_memrealtime'} s[{90+2*i}:{91+2*i}]")
            self("s_waitcnt lgkmcnt(0)")
    def exit(self, kidx, swave="s3", srd="s[16:19]"):
        if Asm.TS:
            from layout import WS_TS
            self(f"""
            s_waitcnt vmcnt(0) lgkmcnt(0)
            s_memrealtime s[98:99]
            s_lshl_b32 s100, s2, 4
            s_add_u32 s100, s100, {swave}
            s_lshl_b32 s100, s100, 4
            s_add_u32 s100, s100, {WS_TS + kidx * 65536 * 2}
            s_waitcnt lgkmcnt(0)
            v_mov_b32 v0, s96
            v_mov_b32 v1, s98
            v_mov_b32 v2, s92
            v_mov_b32 v3, s94
            v_mov_b32 v4, 0
            s_mov_b64 exec, 1
            buffer_store_dwordx4 v[0:3], v4, {srd}, s100 offen
            """)
        self("s_endpgm")
    def text(self):
        return "\n".join(self.L) + "\n"

def vr(b, n=1):
    return f"v{b}" if n == 1 else f"v[{b}:{b+n-1}]"
def sr(b, n=1):
    return f"s{b}" if n == 1 else f"s[{b}:{b+n-1}]"

def kernel_desc(name, nvgpr, nsgpr=102):
    acc = (nvgpr + 3) // 4 * 4
    return f""".amdhsa_kernel {name}
  .amdhsa_next_free_vgpr {nvgpr}
  .amdhsa_next_free_sgpr {nsgpr}
  .amdhsa_accum_offset {acc}
  .amdhsa_group_segment_fixed_size 0
  .amdhsa_kernarg_size 88
  .amdhsa_user_sgpr_count 2
  .amdhsa_user_sgpr_kernarg_segment_ptr 1
  .amdhsa_system_sgpr_workgroup_id_x 1
.end_amdhsa_kernel
"""
import struct
def f32(x):
    return "0x%08x" % struct.unpack("<I", struct.pack("<f", x))[0]
```

```python
from asmlib import *
from layout import *
import gemm
from gemm import G, KLoop
from k1 import srd
import os
ABL = os.environ.get('ABL', '')
TF = os.environ.get('TF', 'sc1')

def gen_ffn(a, lds_base, kidx):
    L_PROG = lds_base
    L_CNT = lds_base + 16
    L_RED = lds_base + 64
    g = G(2, 72, 12, 3, L_RED, L_PROG, "FF")
    gemm.setup(a, g, 50)
    a(f"""
    v_mov_b32 v{g.vT}, {L_CNT}
    ds_write_b32 v{g.vT}, v{g.vPV}
    s_lshl_b32 s53, s51, 11               ; 2r*1024
    s_mul_i32 s54, s52, 7
    s_lshr_b32 s36, s50, 1
    s_lshl_b32 s36, s36, 10
    s_add_u32 s55, s53, s36               ; (2r+mb)*1024
    s_and_b32 s36, s50, 1
    s_lshl_b32 s37, s36, 16
    s_add_u32 s55, s55, s37               ; + half*65536
    s_lshl_b32 s68, s36, 5
    s_mov_b32 s69, {f32(gemm.C2)}
    """)
    a.vm_issued = 0
    vTL, vTD = g.acc, g.acc + 1
    def touch(base, per_wave, n):
        a(f"""
        s_mul_i32 s36, s74, {per_wave}
        s_add_u32 s36, s36, {base}
        """)
        for i in range(n):
            a.vm(f"buffer_load_dword v{vTD+i}, v{vTL}, s[16:19], s36 offen {TF}")
            if i + 1 < n: a("s_add_u32 s36, s36, 8192")
    if 'T' in ABL:
        a(f"""
        s_lshr_b32 s74, s2, 3
        s_lshl_b32 s74, s74, 2
        s_add_u32 s74, s74, s50               ; q = idx*4 + j
        v_lshlrev_b32 v{vTL}, 7, v1
        ; xn: kstep q%40 of this XCD's 8 m-blocks
        s_mul_i32 s36, s74, 205
        s_lshr_b32 s36, s36, 13               ; q/40
        s_mul_i32 s36, s36, 40
        s_sub_u32 s36, s74, s36
        s_lshl_b32 s36, s36, 16
        s_and_b32 s37, s2, 7
        s_lshl_b32 s37, s37, 13
        s_add_u32 s36, s36, s37
        s_add_u32 s36, s36, {WS_XN}
        """)
        a.vm(f"buffer_load_dword v{vTD+3}, v{vTL}, s[16:19], s36 offen {TF}")
        touch(WS_W1F, 17920, 3)
    passes = [(0, 3), (3, 2), (5, 2)]
    def mk1(o, NB):
        a(f"""
        s_mul_i32 s70, s50, {10*65536}
        s_add_u32 s70, s70, s53
        s_add_u32 s70, s70, {WS_XN}
        s_mul_i32 s71, s50, {10*56}
        s_add_u32 s71, s71, s54
        s_lshl_b32 s71, s71, 10
        s_add_u32 s71, s71, {WS_W1F + o*1024}
        """)
        kl = KLoop(a, g, NB, 10, 70, 71, 65536, 56 * 1024)
        kl.prefetch()
        return kl
    kl = mk1(*passes[0])
    a("s_waitcnt lgkmcnt(0)")
    a("s_barrier")
    BI = g.sets + 40
    vBO, vC1 = BI + 12, BI + 13
    def epilogue(o, NB, sbase, srdb, act, dst, flag, nxt, keep=None):
        a(f"""
        v_lshrrev_b32 v{vBO}, 5, v1
        v_lshlrev_b32 v{vBO}, 3, v{vBO}
        s_add_u32 s36, s{sbase}, {o}
        s_lshl_b32 s72, s36, 6
        s_add_u32 s72, s72, s68
        s_lshl_b32 s73, s36, 17
        s_add_u32 s73, s73, s55
        s_add_u32 s73, s73, {dst}
        v_mov_b32 v{vC1}, {f32(gemm.C1)}
        """)
        bt = [gemm.bias_load(a, BI + 4 * nb, vBO, srdb, 72, nb) for nb in range(NB)]
        n = nxt() if nxt else None
        gemm.reduce(a, g, NB, 50)
        for nb in range(NB):
            oo = g.acc + 32 * nb
            a.wait_vm(bt[nb])
            gemm.add_bias(a, oo, BI + 4 * nb, oo + 8)
            if act:
                gemm.gelu(a, oo, oo + 8, 69, vC1)
            if keep is None:
                gemm.pack8(a, oo, oo + 16)
                a.vm(f"buffer_store_dwordx4 {vr(oo+16,4)}, v{g.vL16}, s[16:19], s73 offen {flag}")
                if nb + 1 < NB:
                    a(f"s_add_u32 s73, s73, {2*65536}")
            else:
                gemm.pack8(a, oo, keep + 4 * nb)
        a("s_nop 1")
        return n
    KEEP = [g.acc + 64 + 8 + 8, g.acc + 64, g.acc + 16]
    keepregs = []
    for i, (o, NB) in enumerate(passes):
        kl.run()
        nxt = (lambda i=i: mk1(*passes[i + 1])) if i + 1 < len(passes) else None
        kp = [g.acc + 64 + 16, g.acc + 64, g.acc + 64 + 8][i]
        kl = epilogue(o, NB, 54, "s[56:59]", True, WS_H, "sc1", nxt, keep=kp)
        keepregs += [kp + 4 * nb for nb in range(NB)]
        if i == 0 and 'T' in ABL:
            vTL, vTD = g.acc + 64, g.acc + 65
            a(f"v_lshlrev_b32 v{vTL}, 7, v1")
            touch(WS_W2F, 17280, 3)
    a(f"""
    s_lshl_b32 s73, s54, 17
    s_add_u32 s73, s73, s55
    s_add_u32 s73, s73, {WS_H}
    """)
    for r in keepregs:
        a(f"buffer_store_dwordx4 {vr(r,4)}, v{g.vL16}, s[16:19], s73 offen sc1")
        a(f"s_add_u32 s73, s73, {2*65536}")
    a.ts_mark(1)
    a(f"""
    s_waitcnt vmcnt(0)
    v_mov_b32 v{BI}, {L_CNT}
    v_mov_b32 v{BI+1}, 1
    s_lshl_b32 s36, s51, 2
    v_mov_b32 v{BI+3}, s36
    s_mov_b64 exec, 1
    ds_add_rtn_u32 v{BI+2}, v{BI}, v{BI+1}
    s_waitcnt lgkmcnt(0)
    v_readfirstlane_b32 s36, v{BI+2}
    s_cmp_lg_u32 s36, 3
    s_cbranch_scc1 FF_POLL
    buffer_atomic_add v{BI+1}, v{BI+3}, s[64:67], 0 offen sc1
    """)
    a.label("FF_POLL")
    a(f"""
    buffer_load_dword v{BI+2}, v{BI+3}, s[64:67], 0 offen sc1
    s_waitcnt vmcnt(0)
    v_readfirstlane_b32 s36, v{BI+2}
    s_cmp_ge_u32 s36, 8
    s_cbranch_scc1 FF_GO
    s_sleep 8
    s_branch FF_POLL
    """)
    a.label("FF_GO")
    a.ts_mark(2)
    a(f"""
    s_mov_b64 exec, -1
    s_mul_i32 s54, s52, 3
    s_lshl_b32 s36, s52, 1
    s_add_u32 s36, s36, 4
    s_cmp_lt_u32 s52, 4
    s_cselect_b32 s54, s54, s36
    s_mul_i32 s70, s50, {27*65536}
    s_add_u32 s70, s70, s53
    s_add_u32 s70, s70, {WS_H}
    s_mul_i32 s71, s50, {27*20}
    s_add_u32 s71, s71, s54
    s_lshl_b32 s71, s71, 10
    s_add_u32 s71, s71, {WS_W2F}
    v_lshrrev_b32 v{g.acc}, 4, v1
    v_lshlrev_b32 v{g.acc}, 16, v{g.acc}
    v_and_b32 v{g.acc+1}, 15, v1
    v_lshl_add_u32 v{g.acc}, v{g.acc+1}, 7, v{g.acc}
    s_lshl_b32 s36, s52, 2
    s_add_u32 s36, s36, s50
    s_min_u32 s36, s36, 26
    s_lshl_b32 s36, s36, 18
    s_add_u32 s36, s36, s53
    s_add_u32 s36, s36, {WS_H}
    {"buffer_load_dword v%d, v%d, s[16:19], s36 offen sc1" % (g.acc+1, g.acc) if 'H' in ABL else ""}
    s_cmp_lt_u32 s52, 4
    s_cbranch_scc0 FF2_NB2
    """)
    ph = g.phase
    for NB in (3, 2):
        if NB == 2:
            a.label("FF2_NB2")
        g.phase = ph
        a.vm_issued = 0
        kl = KLoop(a, g, NB, 27, 70, 71, 65536, 20 * 1024, aflag="sc1")
        kl.prefetch()
        kl.run()
        epilogue(0, NB, 54, "s[60:63]", False, WS_Y, "", None)
        a.exit(kidx)
    return L_RED + 4 * 18432
```

```python
from asmlib import *
from layout import *

class G:
    def __init__(s, base_v, acc, sets, nsets, lds_red, lds_prog, tag):
        s.vA0, s.vA1, s.vB, s.vL16, s.vPW, s.vPR, s.vPV, s.vT, s.vRW, s.vRR = range(base_v, base_v + 10)
        s.acc = acc; s.sets = sets; s.nsets = nsets
        s.red = lds_red; s.prog = lds_prog; s.tag = tag
        s.phase = 0; s.nspin = 0

def setup(a, g, sj):
    a(f"""
    v_lshlrev_b32 v{g.vL16}, 4, v1
    s_lshr_b32 s36, s{sj}, 1
    s_lshl_b32 s36, s36, 10
    v_add_u32 v{g.vA0}, s36, v{g.vL16}
    v_xor_b32 v{g.vA1}, 0x400, v{g.vA0}         ; m-slot 1
    s_and_b32 s36, s{sj}, 1
    s_lshl_b32 s36, s36, 8
    v_xor_b32 v{g.vB}, s36, v{g.vL16}           ; lane ^ 16*(j&1)
    s_lshl_b32 s36, s{sj}, 2
    s_add_u32 s36, s36, {g.prog}
    v_mov_b32 v{g.vPW}, s36
    v_and_b32 v{g.vPR}, 3, v1
    v_lshlrev_b32 v{g.vPR}, 2, v{g.vPR}
    v_add_u32 v{g.vPR}, {g.prog}, v{g.vPR}
    v_mov_b32 v{g.vPV}, 0
    s_mul_i32 s36, s{sj}, 18432
    s_add_u32 s36, s36, {g.red}
    v_add_u32 v{g.vRR}, s36, v{g.vL16}
    ds_write_b32 v{g.vPW}, v{g.vPV}
    """)

def sync(a, g, use_barrier=False):
    if use_barrier:
        a("s_waitcnt lgkmcnt(0)")
        a("s_barrier")
        return
    arrive(a, g); wait(a, g)

def arrive(a, g):
    g.phase += 1
    a(f"""
    v_mov_b32 v{g.vPV}, {g.phase}
    s_waitcnt lgkmcnt(0)
    ds_write_b32 v{g.vPW}, v{g.vPV}
    """)

def wait(a, g):
    g.nspin += 1
    L = f"{g.tag}_SP{g.nspin}"
    a.label(L)
    a(f"""
    ds_read_b32 v{g.vT}, v{g.vPR}
    s_waitcnt lgkmcnt(0)
    v_cmp_gt_u32 vcc, {g.phase}, v{g.vT}
    s_nop 1
    s_cbranch_vccz {L}_OK
    s_sleep 2
    s_branch {L}
    """)
    a.label(L + "_OK")

class KLoop:
    def __init__(s, a, g, NB, nk, sA, sB, strideA, strideB, aflag="", accpfx="v", setsz=None):
        s.a, s.g, s.NB, s.nk, s.sA, s.sB, s.strideA, s.strideB, s.aflag, s.accpfx = a, g, NB, nk, sA, sB, strideA, strideB, aflag, accpfx
        s.toks = {}
        s.setsz = setsz or 20
        s.D = g.nsets - 1
    def loads(s, k):
        a, g, NB = s.a, s.g, s.NB
        b = g.sets + s.setsz * (k % g.nsets)
        a.vm(f"buffer_load_dwordx4 {vr(b,4)}, v{g.vA0}, s[16:19], s{s.sA} offen {s.aflag}")
        for nb in range(NB):
            t = a.vm(f"buffer_load_dwordx4 {vr(b+8+4*nb,4)}, v{g.vB}, s[16:19], s{s.sB} offen offset:{1024*nb}")
        s.toks[(k, 1)] = t
        s.toks[(k, 2)] = a.vm(f"buffer_load_dwordx4 {vr(b+4,4)}, v{g.vA1}, s[16:19], s{s.sA} offen {s.aflag}")
        if k + 1 < s.nk:
            a(f"s_add_u32 s{s.sA}, s{s.sA}, {s.strideA}")
            a(f"s_add_u32 s{s.sB}, s{s.sB}, {s.strideB}")
    def prefetch(s):
        for k in range(min(s.D, s.nk)):
            s.loads(k)
    def run(s):
        a, g, NB = s.a, s.g, s.NB
        def R(b, n): return f"{s.accpfx}[{b}:{b+n-1}]"
        for k in range(s.nk):
            b = g.sets + s.setsz * (k % g.nsets)
            a.wait_vm(s.toks[(k, 1)])
            for nb in range(NB):
                d = g.acc + 16 * (2 * nb)
                a(f"v_mfma_f32_32x32x16_bf16 {R(d,16)}, {vr(b+8+4*nb,4)}, {vr(b,4)}, {R(d,16) if k else '0'}")
                if nb == 0 and k + s.D < s.nk:
                    s.loads(k + s.D)
            a.wait_vm(s.toks[(k, 2)])
            for nb in range(NB):
                d = g.acc + 16 * (2 * nb + 1)
                a(f"v_mfma_f32_32x32x16_bf16 {R(d,16)}, {vr(b+8+4*nb,4)}, {vr(b+4,4)}, {R(d,16) if k else '0'}")

def reduce(a, g, NB, sj, use_barrier=False, accpfx="v"):
    def R(b, n): return f"{accpfx}[{b}:{b+n-1}]"
    if g.phase % 2 == 0 and g.phase > 0 and not use_barrier:
        wait(a, g)
    a("s_nop 7")
    for x in (1, 2, 3):
        a(f"""
        s_xor_b32 s36, s{sj}, {x}
        s_mul_i32 s36, s36, 18432
        s_add_u32 s36, s36, {g.red + (x-1)*6144}
        v_add_u32 v{g.vRW}, s36, v{g.vL16}
        """)
        for nb in range(NB):
            r = g.acc + 32 * nb + 16 * (x >> 1) + 8 * (x & 1)
            a(f"ds_write_b128 v{g.vRW}, {R(r,4)} offset:{2048*nb}")
            a(f"ds_write_b128 v{g.vRW}, {R(r+4,4)} offset:{2048*nb+1024}")
    sync(a, g, use_barrier)
    for nb in range(NB):
        for x in (1, 2, 3):
            r = g.acc + 32 * nb + 16 * (x >> 1) + 8 * (x & 1)
            a(f"ds_read_b128 {vr(r,4)}, v{g.vRR} offset:{(x-1)*6144+2048*nb}")
            a(f"ds_read_b128 {vr(r+4,4)}, v{g.vRR} offset:{(x-1)*6144+2048*nb+1024}")
        if nb >= 1:
            addup(a, g, nb - 1, 6)
    addup(a, g, NB - 1, 0)
    if not use_barrier:
        arrive(a, g)

def addup(a, g, nb, cnt):
    a(f"s_waitcnt lgkmcnt({cnt})")
    o = g.acc + 32 * nb
    for i in range(8):
        a(f"v_add_f32 v{o+8+i}, v{o+8+i}, v{o+16+i}")
        a(f"v_add_f32 v{o+i}, v{o+i}, v{o+24+i}")
    for i in range(8):
        a(f"v_add_f32 v{o+i}, v{o+i}, v{o+8+i}")

def bias_load(a, vdst, vboff, srd, soff, nb):
    a.vm(f"buffer_load_dwordx2 {vr(vdst,2)}, v{vboff}, {srd}, s{soff} offen offset:{64*nb}")
    return a.vm(f"buffer_load_dwordx2 {vr(vdst+2,2)}, v{vboff}, {srd}, s{soff} offen offset:{64*nb+16}")

def add_bias(a, o, vb, t):
    for i in range(4):
        a(f"v_lshlrev_b32 v{t}, 16, v{vb+i}")
        a(f"v_and_b32 v{t+1}, 0xffff0000, v{vb+i}")
        a(f"v_add_f32 v{o+2*i}, v{o+2*i}, v{t}")
        a(f"v_add_f32 v{o+2*i+1}, v{o+2*i+1}, v{t+1}")

C1 = -2.0 * 0.7978845608028654 * 1.4426950408889634
C2 = C1 * 0.044715
def gelu(a, o, t, sC2, vC1):
    for i in range(8): a(f"v_mul_f32 v{t+i}, v{o+i}, v{o+i}")
    for i in range(8): a(f"v_fma_f32 v{t+i}, v{t+i}, s{sC2}, v{vC1}")
    for i in range(8): a(f"v_mul_f32 v{t+i}, v{t+i}, v{o+i}")
    for i in range(8): a(f"v_exp_f32 v{t+i}, v{t+i}")
    for i in range(8): a(f"v_add_f32 v{t+i}, 1.0, v{t+i}")
    for i in range(8): a(f"v_rcp_f32 v{t+i}, v{t+i}")
    for i in range(8): a(f"v_mul_f32 v{o+i}, v{o+i}, v{t+i}")

def pack8(a, o, d):
    for i in range(4):
        a(f"v_cvt_pk_bf16_f32 v{d+i}, v{o+2*i}, v{o+2*i+1}")
```

```python
from asmlib import *
from layout import *
import os
ABL = os.environ.get('ABL', '')
STF = os.environ.get('STF', '')

NSLOT = 4
L_X = 0
L_W = 65536
L_PREP = 32768
L_MEAN = 131072
L_RINV = L_MEAN + 512
L_MR = L_RINV + 512
L_CS = L_MR + 512
K1_LDS = L_CS + 1024
NPIECE = 1300

def srd(a, d, base, nbytes):
    a(f"s_mov_b32 s{d}, s{base}")
    a(f"s_mov_b32 s{d+1}, s{base+1}")
    a(f"s_mov_b32 s{d+2}, {nbytes}")
    a(f"s_mov_b32 s{d+3}, 0x00020000")

def prep_setup(a, sp, vlane, vG, vtmp):
    a(f"""
    s_movk_i32 s37, 1280
    s_mov_b32 s38, {(1<<20)//5+1}
    s_cmp_lt_u32 s{sp}, 560
    s_cselect_b32 s36, 0, 560
    s_cselect_b32 s37, 3456, s37
    s_cselect_b32 s20, s26, s28
    s_cselect_b32 s21, s27, s29
    s_mov_b32 s22, {640*1728*2}
    s_cselect_b32 s38, {(1<<20)//14+1}, s38
    s_cselect_b32 s39, 14, 5
    s_cmp_lt_u32 s{sp}, 1100
    s_cselect_b32 s36, s36, 1100
    s_cselect_b32 s20, s20, s24
    s_cselect_b32 s21, s21, s25
    s_cselect_b32 s22, s22, {640*640*2}
    s_mov_b32 s23, 0x00020000
    s_sub_u32 s36, s{sp}, s36             ; q
    s_mul_i32 s40, s36, s38
    s_lshr_b32 s40, s40, 20
    s_mul_i32 s41, s40, s39
    s_sub_u32 s36, s36, s41               ; cb
    s_mul_i32 s40, s40, s37
    s_lshl_b32 s40, s40, 4                ; kstep*16*stride
    s_lshl_b32 s36, s36, 8
    s_add_u32 s40, s40, s36               ; + cb*256
    s_lshl_b32 s41, s37, 2                ; 4*stride
    s_lshl_b32 s42, s{sp}, 12
    s_add_u32 s42, s42, {WS_W1F}
    v_lshrrev_b32 v{vtmp}, 2, v{vlane}
    v_and_b32 v{vtmp}, 3, v{vtmp}          ; row = (l/4)%4
    v_mul_lo_u32 v{vG}, v{vtmp}, s37
    v_and_b32 v{vtmp}, 3, v{vlane}
    v_lshl_add_u32 v{vG}, v{vtmp}, 4, v{vG}   ; + (l%4)*16
    v_lshrrev_b32 v{vtmp}, 4, v{vlane}
    v_lshl_add_u32 v{vG}, v{vtmp}, 6, v{vG}   ; + (l/16)*64
    """)

def prep_loads(a, vG, vD):
    for j in range(4):
        a(f"buffer_load_dwordx4 {vr(vD+4*j,4)}, v{vG}, s[20:23], s40 offen")
        if j < 3:
            a("s_add_u32 s40, s40, s41")

def prep_finish(a, vD, vL16, vTR, vG16, vO):
    a("s_waitcnt vmcnt(0)")
    for j in range(4):
        a(f"ds_write_b128 v{vL16}, {vr(vD+4*j,4)} offset:{j*1024}")
    a("s_waitcnt lgkmcnt(0)")
    for nb in range(4):
        for r in range(2):
            a(f"ds_read_b64_tr_b16 {vr(vO+4*nb+2*r,2)}, v{vTR} offset:{r*2048+nb*256}")
    for nb in range(4):
        a(f"s_waitcnt lgkmcnt({6-2*nb})")
        a(f"buffer_store_dwordx4 {vr(vO+4*nb,4)}, v{vG16}, s[16:19], s42 offen offset:{nb*1024} {STF}")

def tr_pattern(a, vD, vlane, vtmp, hh_mul):
    a(f"""
    v_lshrrev_b32 v{vtmp}, 5, v{vlane}
    v_mul_u32_u24 v{vD}, {hh_mul}, v{vtmp}
    v_bfe_u32 v{vtmp}, v{vlane}, 2, 2
    v_lshl_add_u32 v{vD}, v{vtmp}, 6, v{vD}
    v_bfe_u32 v{vtmp}, v{vlane}, 4, 1
    v_lshl_add_u32 v{vD}, v{vtmp}, 5, v{vD}
    v_and_b32 v{vtmp}, 3, v{vlane}
    v_lshl_add_u32 v{vD}, v{vtmp}, 3, v{vD}
    """)

def bf16r(a, v):
    a(f"v_cvt_pk_bf16_f32 v{v}, v{v}, v{v}")
    a(f"v_and_b32 v{v}, 0xffff0000, v{v}")

ABL = os.environ.get('ABL', '')
STF = os.environ.get('STF', '')
def gen_k1():
    a = Asm()
    a.raw(".p2align 8")
    a.raw(".type k1_kernel,@function")
    a.label("k1_kernel")
    a(f"""
    s_cmp_ge_u32 s2, 256
    s_cbranch_scc1 K1_END
    """)
    a.ts_start()
    a(f"""
    s_load_dwordx4 s[4:7], s[0:1], 0
    s_load_dwordx2 s[30:31], s[0:1], 80
    s_load_dwordx2 s[24:25], s[0:1], 16
    s_load_dwordx2 s[26:27], s[0:1], 32
    s_load_dwordx2 s[28:29], s[0:1], 48
    v_lshrrev_b32 v1, 6, v0
    s_and_b32 s34, s2, 7                 ; xcd
    v_readfirstlane_b32 s3, v1           ; wave
    v_and_b32 v1, 63, v0                 ; lane
    s_lshr_b32 s35, s2, 3                ; idx
    s_and_b32 s32, s34, 3
    s_lshl_b32 s32, s32, 2               ; mgroup*4
    s_and_b32 s36, s35, 3
    s_add_u32 s32, s32, s36              ; mt
    s_lshr_b32 s33, s35, 2               ; 0..7
    s_lshr_b32 s36, s34, 2               ; ngroup
    s_sub_u32 s33, s33, s36
    s_and_b32 s33, s33, 7
    s_lshl_b32 s36, s36, 3
    s_add_u32 s33, s33, s36
    s_cmp_eq_u32 s33, 15
    s_cbranch_scc1 K1_STATS
    s_cmp_lt_u32 s3, 4
    s_cbranch_scc1 K1_MFMA
    """)
    vXG = [2, 3]; vWG = 6
    vS, vQ = 8, 10
    vT, vT2, vT3 = 12, 13, 14
    vPG, vP16, vPL, vPTR, vXR = 15, 16, 17, 18, 19
    vXF = 28
    vPD = 36; vPO = 52
    SET = 72
    a(f"""
    s_sub_u32 s34, s3, 4                  ; hw 0..7
    ; x global offsets: row = 128mt + 16hw + 8j + l/8 ; chunk = (l%8) ^ ((row>>1)&7) , (row>>1)&7 = (4j + l/16)&7
    v_lshrrev_b32 v{vT}, 3, v1
    v_and_b32 v{vT2}, 7, v1
    v_lshrrev_b32 v{vT3}, 4, v1
    v_xor_b32 v{vT2}, v{vT2}, v{vT3}
    v_mul_u32_u24 v{vXG[0]}, 1280, v{vT}
    s_lshl_b32 s36, s32, 3
    s_add_u32 s36, s36, s34
    s_mul_i32 s36, s36, {16*1280}
    v_add_u32 v{vXG[0]}, s36, v{vXG[0]}
    v_add_u32 v{vXG[1]}, {8*1280}, v{vXG[0]}
    v_lshl_add_u32 v{vXG[0]}, v{vT2}, 4, v{vXG[0]}
    v_xor_b32 v{vT2}, 4, v{vT2}
    v_lshl_add_u32 v{vXG[1]}, v{vT2}, 4, v{vXG[1]}
    ; W global: row = 64st + 8hw + 4j + (l/4)%4 ; col bytes = 256jt + (l%4)*16 + (l/16)*64
    v_bfe_u32 v{vT}, v1, 2, 2
    v_mul_u32_u24 v{vWG}, 3840, v{vT}
    v_and_b32 v{vT}, 3, v1
    v_lshl_add_u32 v{vWG}, v{vT}, 4, v{vWG}
    v_lshl_add_u32 v{vWG}, v{vT3}, 6, v{vWG}
    s_mul_i32 s46, s34, {8*3840}
    s_lshl_b32 s36, s33, 8
    s_add_u32 s46, s46, s36
    s_mov_b32 s45, 0
    s_lshl_b32 s44, s34, 11
    s_waitcnt lgkmcnt(0)
    """)
    srd(a, 8, 4, S * D * 2)
    srd(a, 12, 6, D * 3 * D * 2)
    srd(a, 16, 30, WS_END)
    toks = {}
    def loads(st):
        slot = st % NSLOT
        if 'L' in ABL and st > 0:
            toks[st] = a.vm_issued
            return
        for j in range(2):
            a(f"s_add_u32 m0, s44, {L_X + slot*16384 + j*1024}")
            a("s_nop 0")
            a.vm(f"buffer_load_dwordx4 v{vXG[j]}, s[8:11], s45 offen lds")
            a(f"s_add_u32 m0, s44, {L_W + slot*16384 + j*1024}")
            a("s_nop 0")
            toks[st] = a.vm(f"buffer_load_dwordx4 v{vWG}, s[12:15], s46 offen lds")
            a(f"s_add_u32 s46, s46, {4*3840 if j < 1 else 60*3840}")
        a("s_add_u32 s45, s45, 128")
    for st in range(NSLOT - 1):
        loads(st)
    for i in range(8):
        a(f"v_mov_b32 v{vXF+i}, 0")
    a(f"""
    v_lshlrev_b32 v{vP16}, 4, v1
    v_and_b32 v{vT3}, 31, v1
    v_bfe_u32 v{vXR}, v{vT3}, 1, 3
    s_and_b32 s36, s34, 1
    s_lshl_b32 s36, s36, 2
    v_xor_b32 v{vXR}, s36, v{vXR}
    v_lshlrev_b32 v{vXR}, 4, v{vXR}
    v_lshl_add_u32 v{vXR}, v{vT3}, 7, v{vXR}
    v_lshrrev_b32 v{vT3}, 5, v1
    v_lshl_add_u32 v{vXR}, v{vT3}, 3, v{vXR}
    s_lshr_b32 s36, s34, 1
    s_lshl_b32 s36, s36, 12
    v_add_u32 v{vXR}, s36, v{vXR}
    """)
    def xf_reads(st):
        a(f"""
        s_cmp_lg_u32 s33, {st}
        s_cbranch_scc1 K1_H_XF{st}
        """)
        for c in range(4):
            a(f"v_xor_b32 v{vT3}, {16*c}, v{vXR}")
            a(f"ds_read_b64 {vr(vXF+2*c,2)}, v{vT3} offset:{(st%NSLOT)*16384}")
        a("s_waitcnt lgkmcnt(0)")
        a.label(f"K1_H_XF{st}")
    for st in range(10):
        a.wait_vm(toks[st])
        a("s_barrier")
        if st + NSLOT - 1 < 10:
            loads(st + NSLOT - 1)
        xf_reads(st)
        if st == 1:
            a(f"""
            s_mul_i32 s47, s32, 15
            s_add_u32 s47, s47, s33
            s_mul_i32 s36, s34, 240
            s_add_u32 s47, s47, s36
            """)
            prep_setup(a, 47, 1, vPG, vT3)
            tr_pattern(a, vPTR, 1, vT3, 1024)
            a(f"""
            s_lshl_b32 s36, s34, 12
            s_add_u32 s36, s36, {L_PREP}
            v_add_u32 v{vPTR}, s36, v{vPTR}
            v_add_u32 v{vPL}, s36, v{vP16}
            """)
    a(f"""
    s_cmp_ge_u32 s47, {NPIECE}
    s_cbranch_scc1 K1_H_NOPL
    """)
    prep_loads(a, vPG, vPD)
    a.label("K1_H_NOPL")
    a(f"""
    s_cmp_lg_u32 s34, 7
    s_cbranch_scc1 K1_H_NOST
    s_load_dwordx2 s[48:49], s[0:1], 72
    s_lshl_b32 s36, s32, 2
    v_mov_b32 v{vT}, s36
    s_waitcnt lgkmcnt(0)
    s_mov_b32 s52, s48
    s_mov_b32 s53, s49
    s_movk_i32 s54, 256
    s_mov_b32 s55, 0x00020000
    """)
    a.label("K1_H_POLL")
    a(f"""
    buffer_load_dword v{vT2}, v{vT}, s[52:55], 0 offen sc1
    s_waitcnt vmcnt(0)
    v_readfirstlane_b32 s36, v{vT2}
    s_cmp_eq_u32 s36, 0
    s_cbranch_scc0 K1_H_GOT
    s_sleep 2
    s_branch K1_H_POLL
    """)
    a.label("K1_H_GOT")
    a(f"""
    s_mul_i32 s36, s32, 1536
    s_add_u32 s36, s36, {WS_STAT}
    v_lshlrev_b32 v{vT}, 3, v1
    buffer_load_dwordx2 {vr(SET,2)}, v{vT}, s[16:19], s36 offen sc1
    buffer_load_dwordx2 {vr(SET+2,2)}, v{vT}, s[16:19], s36 offen offset:512 sc1
    buffer_load_dwordx2 {vr(SET+4,2)}, v{vT}, s[16:19], s36 offen offset:1024 sc1
    v_add_u32 v{vT}, {L_MEAN}, v{vT}
    s_waitcnt vmcnt(0)
    ds_write_b64 v{vT}, {vr(SET,2)}
    ds_write_b64 v{vT}, {vr(SET+2,2)} offset:512
    ds_write_b64 v{vT}, {vr(SET+4,2)} offset:1024
    s_waitcnt lgkmcnt(0)
    """)
    a.label("K1_H_NOST")
    a(f"""
    s_barrier
    s_cmp_ge_u32 s33, 10
    s_cbranch_scc1 K1_H_NOXN
    v_and_b32 v{vT}, 31, v1
    s_lshr_b32 s36, s34, 1
    s_lshl_b32 s37, s36, 7
    s_add_u32 s37, s37, {L_MEAN}
    v_lshl_add_u32 v{vT}, v{vT}, 2, s37          ; (32(hw/2) + m)*4
    ds_read_b32 v{vS}, v{vT}                     ; mean
    ds_read_b32 v{vQ}, v{vT} offset:512          ; rinv
    ; dst: kstep = 4jt + 2(hw%2) + s ; mblock = 4mt + hw/2
    s_lshl_b32 s37, s32, 2
    s_add_u32 s37, s37, s36
    s_lshl_b32 s37, s37, 10
    s_lshl_b32 s36, s33, 1
    s_and_b32 s38, s34, 1
    s_add_u32 s36, s36, s38
    s_lshl_b32 s36, s36, 17
    s_add_u32 s36, s36, s37
    s_add_u32 s36, s36, {WS_XN}
    s_waitcnt lgkmcnt(0)
    """)
    for s in range(2):
        o = SET + 16 * s
        for i in range(4):
            x = vXF + 4 * s + i
            a(f"v_lshlrev_b32 v{o+2*i}, 16, v{x}")
            a(f"v_and_b32 v{o+2*i+1}, 0xffff0000, v{x}")
        for i in range(8):
            a(f"v_sub_f32 v{o+i}, v{o+i}, v{vS}")
        for i in range(4):
            a(f"v_cvt_pk_bf16_f32 v{o+8+i}, v{o+2*i}, v{o+2*i+1}")
        for i in range(4):
            a(f"v_lshlrev_b32 v{o+2*i}, 16, v{o+8+i}")
            a(f"v_and_b32 v{o+2*i+1}, 0xffff0000, v{o+8+i}")
        for i in range(8):
            a(f"v_mul_f32 v{o+i}, v{o+i}, v{vQ}")
        for i in range(4):
            a(f"v_cvt_pk_bf16_f32 v{o+8+i}, v{o+2*i}, v{o+2*i+1}")
        a(f"buffer_store_dwordx4 {vr(o+8,4)}, v{vP16}, s[16:19], s36 offen {STF}")
        a(f"s_add_u32 s36, s36, 65536")
    a.label("K1_H_NOXN")
    a(f"""
    s_cmp_ge_u32 s47, {NPIECE}
    s_cbranch_scc1 K1_EXIT
    """)
    prep_finish(a, vPD, vPL, vPTR, vP16, vPO)
    a.label("K1_EXIT")
    a.exit(0)

    a.label("K1_STATS")
    XR = 16
    a(f"""
    s_cmp_ge_u32 s3, 8
    s_cbranch_scc1 K1_END
    s_load_dwordx2 s[48:49], s[0:1], 72
    v_lshrrev_b32 v2, 3, v1
    v_and_b32 v3, 7, v1
    v_mul_u32_u24 v4, 1280, v2
    v_lshl_add_u32 v4, v3, 4, v4
    s_lshl_b32 s36, s32, 3
    s_add_u32 s36, s36, s3
    s_mul_i32 s36, s36, {16*1280}
    s_add_u32 s37, s36, {8*1280}
    s_waitcnt lgkmcnt(0)
    """)
    srd(a, 8, 4, S * D * 2)
    srd(a, 16, 30, WS_END)
    srd(a, 52, 48, 256)
    a.vm_issued = 0
    tk = {}
    for g in range(2):
        for i in range(10):
            tk[(g, i)] = a.vm(f"buffer_load_dwordx4 {vr(XR+40*g+4*i,4)}, v4, s[8:11], s{36+g} offen offset:{128*i}")
    vS, vQ = 8, 10
    for i in range(4):
        a(f"v_mov_b32 v{vS+i}, 0")
    a("s_mov_b32 s38, 0x3f803f80")
    for g in range(2):
        for i in range(10):
            a.wait_vm(tk[(g, i)])
            for e in range(4):
                r = XR + 40 * g + 4 * i + e
                a(f"v_dot2c_f32_bf16 v{vS+g}, s38, v{r}")
                a(f"v_dot2c_f32_bf16 v{vQ+g}, v{r}, v{r}")
    a("s_nop 3")
    dpp = "row_mask:0xf bank_mask:0xf"
    for pat in ("quad_perm:[1,0,3,2]", "quad_perm:[2,3,0,1]", "row_half_mirror"):
        for i in range(4):
            a(f"v_add_f32_dpp v{vS+i}, v{vS+i}, v{vS+i} {pat} {dpp}")
    a(f"s_mov_b32 s36, {f32(1.0/640)}")
    for j in range(2):
        a(f"v_mul_f32 v{vS+j}, s36, v{vS+j}")
        a(f"v_mul_f32 v{vQ+j}, s36, v{vQ+j}")
    for j in range(2):
        a(f"v_fma_f32 v{vQ+j}, -v{vS+j}, v{vS+j}, v{vQ+j}")
    for j in range(2):
        a(f"v_max_f32 v{vQ+j}, 0, v{vQ+j}")
    for j in range(2):
        bf16r(a, vS + j)
        bf16r(a, vQ + j)
    for j in range(2):
        a(f"v_add_f32 v{vQ+j}, {f32(1e-5)}, v{vQ+j}")
    for j in range(2):
        bf16r(a, vQ + j)
    for j in range(2):
        a(f"v_sqrt_f32 v{vQ+j}, v{vQ+j}")
    a("s_nop 0")
    for j in range(2):
        bf16r(a, vQ + j)
    for j in range(2):
        a(f"v_rcp_f32 v{vQ+j}, v{vQ+j}")
    a(f"""
    s_mul_i32 s36, s32, 1536
    s_lshl_b32 s37, s3, 6
    s_add_u32 s36, s36, s37
    s_add_u32 s36, s36, {WS_STAT}
    v_lshlrev_b32 v2, 2, v2                      ; (l/8)*4
    v_cmp_eq_u32 vcc, 0, v3
    """)
    for j in range(2):
        a(f"v_mul_f32 v{12+j}, v{vS+j}, v{vQ+j}")
    a("s_and_saveexec_b64 s[40:41], vcc")
    for j in range(2):
        a(f"buffer_store_dword v{vS+j}, v2, s[16:19], s36 offen offset:{32*j} sc1")
        a(f"buffer_store_dword v{vQ+j}, v2, s[16:19], s36 offen offset:{512+32*j} sc1")
        a(f"buffer_store_dword v{12+j}, v2, s[16:19], s36 offen offset:{1024+32*j} sc1")
    a(f"""
    s_mov_b64 exec, s[40:41]
    s_waitcnt vmcnt(0)
    s_barrier
    s_cmp_lg_u32 s3, 0
    s_cbranch_scc1 K1_EXIT
    s_lshl_b32 s36, s32, 2
    v_mov_b32 v2, s36
    v_mov_b32 v3, 1
    s_mov_b64 exec, 1
    buffer_store_dword v3, v2, s[52:55], 0 offen sc1
    s_mov_b64 exec, -1
    s_branch K1_EXIT
    """)

    a.label("K1_MFMA")
    ACC = 64
    FR = 32
    vXA = [2, 3, 4, 5]
    vWA = [6, 11]
    vM, vHH, vT, vT2 = 7, 8, 9, 10
    vEA = 12
    vSEL = 24
    vCSA = 28
    EP = 128
    a(f"""
    s_lshr_b32 s34, s3, 1                ; wm
    s_and_b32 s35, s3, 1                 ; wn
    s_xor_b32 s43, s34, 1
    v_and_b32 v{vM}, 31, v1
    v_lshrrev_b32 v{vHH}, 5, v1
    v_bfe_u32 v{vT}, v{vM}, 1, 3
    v_xor_b32 v{vT}, v{vT}, v{vHH}
    v_lshlrev_b32 v{vT}, 4, v{vT}
    v_lshl_add_u32 v{vT}, v{vM}, 7, v{vT}
    s_lshl_b32 s36, s34, 13
    v_add_u32 v{vXA[0]}, s36, v{vT}
    v_xor_b32 v{vXA[1]}, 32, v{vXA[0]}
    v_xor_b32 v{vXA[2]}, 64, v{vXA[0]}
    v_xor_b32 v{vXA[3]}, 0x60, v{vXA[0]}
    ; selector: lane (i=l%16, g=l/16): 1.0 pair if (g%2 == i) else 0
    v_and_b32 v{vT}, 15, v1
    v_bfe_u32 v{vT2}, v1, 4, 1
    v_cmp_eq_u32 vcc, v{vT}, v{vT2}
    v_mov_b32 v{vT}, 0x3f803f80
    s_nop 1
    v_cndmask_b32 v{vSEL}, 0, v{vT}, vcc
    v_cndmask_b32 v{vSEL+1}, 0, v{vT}, vcc
    v_cndmask_b32 v{vSEL+2}, 0, v{vT}, vcc
    v_cndmask_b32 v{vSEL+3}, 0, v{vT}, vcc
    """)
    tr_pattern(a, vWA[0], 1, vT, 2048)
    a(f"""
    s_lshl_b32 s36, s35, 9
    s_add_u32 s36, s36, {L_W}
    s_lshl_b32 s37, s34, 8
    s_add_u32 s36, s36, s37
    v_add_u32 v{vWA[0]}, s36, v{vWA[0]}
    v_xor_b32 v{vWA[1]}, 0x100, v{vWA[0]}
    s_waitcnt lgkmcnt(0)
    """)
    srd(a, 16, 30, WS_END)
    a(f"""
    s_cmp_ge_u32 s33, 10
    s_cbranch_scc1 K1_MF_V
    """)
    snb = [34, 43]
    def read_ops(t):
        st, s = t // 4, t % 4
        slot = st % NSLOT
        f = FR + 16 * (t % 2)
        ops = []
        for r in range(2):
            ops.append(f"ds_read_b64_tr_b16 {vr(f+8+2*r,2)}, v{vWA[0]} offset:{slot*16384+s*4096+r*1024}")
        ops.append(f"ds_read_b128 {vr(f,4)}, v{vXA[s]} offset:{slot*16384}")
        ops.append(f"ds_read_b128 {vr(f+4,4)}, v{vXA[s]} offset:{slot*16384+4096}")
        for r in range(2):
            ops.append(f"ds_read_b64_tr_b16 {vr(f+12+2*r,2)}, v{vWA[1]} offset:{slot*16384+s*4096+r*1024}")
        if 'R' in ABL and t > 1: return []
        return ops
    def mainloop(vtype):
        a("s_barrier")
        if 'E' not in ABL: a.ts_mark(1)
        for o in read_ops(0): a(o)
        for t in range(40):
            a("s_waitcnt lgkmcnt(0)")
            rops = []
            if t + 1 < 40:
                if (t + 1) % 4 == 0:
                    a("s_barrier")
                rops = read_ops(t + 1)
            f = FR + 16 * (t % 2)
            mf = []
            c = vr(vCSA, 4) if t > 0 else "0"
            order = [(0, 0), (0, 1), (1, 0), (1, 1)] if not vtype else [(0, 0), (1, 0), (0, 1), (1, 1)]
            for i, j in order:
                d = ACC + 16 * (2 * i + j)
                cc = vr(d, 16) if t > 0 else "0"
                if not vtype:
                    mf.append(f"v_mfma_f32_32x32x16_bf16 {vr(d,16)}, {vr(f+8+4*i,4)}, {vr(f+4*j,4)}, {cc}")
                else:
                    mf.append(f"v_mfma_f32_32x32x16_bf16 {vr(d,16)}, {vr(f+4*i,4)}, {vr(f+8+4*j,4)}, {cc}")
            mf.insert(3, f"v_mfma_f32_16x16x32_bf16 {vr(vCSA,4)}, {vr(vSEL,4)}, {vr(f+8,4)}, {c}")
            if 'M' in ABL and t > 0: mf = [None] * 5
            for k, m in enumerate(mf):
                if m: a(m)
                for o in rops[2*k:2*k+2]: a(o)
        a.ts_mark(2 if 'E' not in ABL else 1)
        a(f"""
        s_lshl_b32 s36, s35, 8
        s_lshl_b32 s37, s34, 7
        s_add_u32 s36, s36, s37
        s_add_u32 s36, s36, {L_CS}
        v_lshl_add_u32 v{vT}, v1, 2, s36
        s_mov_b64 exec, 0xffff
        s_nop 3
        ds_write_b32 v{vT}, v{vCSA}
        ds_write_b32 v{vT}, v{vCSA+1} offset:64
        s_mov_b64 exec, -1
        s_waitcnt lgkmcnt(0)
        s_barrier
        """)
        if 'E' in ABL: a.ts_mark(2)
    a(f"""
    s_cmp_ge_u32 s33, 5
    s_cbranch_scc1 K1_MF_KADDR
    v_mul_u32_u24 v{vT}, 1280, v{vM}
    v_lshl_add_u32 v{vT}, v{vHH}, 3, v{vT}
    s_lshl_b32 s36, s32, 1
    s_add_u32 s36, s36, s34              ; 2mt+wm
    s_mul_i32 s44, s36, {64*1280}
    s_lshl_b32 s36, s33, 8
    s_add_u32 s44, s44, s36
    s_lshl_b32 s36, s35, 7
    s_add_u32 s44, s44, s36
    s_add_u32 s44, s44, {WS_Q}
    s_add_u32 s45, s44, {32*1280}
    """)
    for i in range(2):
        a(f"s_lshl_b32 s36, s{snb[i]}, 6")
        a(f"v_add_u32 v{vEA+4*i}, s36, v{vT}")
        for aa in range(1, 4):
            a(f"v_add_u32 v{vEA+4*i+aa}, {aa*16}, v{vEA+4*i}")
    a("s_branch K1_MF_QK")
    a.label("K1_MF_KADDR")
    a(f"""
    s_sub_u32 s36, s33, 5
    s_lshl_b32 s36, s36, 5
    s_lshl_b32 s37, s35, 4
    s_add_u32 s36, s36, s37
    s_lshl_b32 s37, s32, 2
    s_lshl_b32 s38, s34, 1
    s_add_u32 s37, s37, s38
    s_mul_i32 s44, s37, {KV_TILE}
    s_add_u32 s44, s44, {WS_KV}
    s_add_u32 s45, s44, {KV_TILE}
    s_mov_b32 s37, {KV_HEAD}
    """)
    for i in range(2):
        a(f"""
        s_lshl_b32 s38, s{snb[i]}, 3
        s_add_u32 s38, s38, s36
        v_add_u32 v{vT2}, s38, v{vHH}
        """)
        for aa in range(4):
            e = vEA + i * 4 + aa
            a(f"""
            v_add_u32 v20, {2*aa}, v{vT2}           ; u
            v_mul_u32_u24 v21, 205, v20
            v_lshrrev_b32 v21, 10, v21              ; h
            v_mul_u32_u24 v22, 5, v21
            v_sub_u32 v20, v20, v22                 ; g
            v_mul_lo_u32 v{e}, v21, s37
            v_lshrrev_b32 v22, 1, v20
            v_lshl_add_u32 v{e}, v22, 9, v{e}
            v_and_b32 v22, 1, v20
            v_lshl_add_u32 v{e}, v22, 3, v{e}
            v_lshrrev_b32 v22, 2, v20
            v_sub_u32 v22, 4, v22
            v_lshlrev_b32 v22, v22, v{vM}
            v_add_u32 v{e}, v{e}, v22
            """)
    a.label("K1_MF_QK")
    mainloop(False)
    a(f"""
    s_lshl_b32 s36, s34, 8
    s_add_u32 s36, s36, {L_MEAN}
    v_lshl_add_u32 v{vT}, v{vM}, 2, s36          ; (64wm+m)*4
    s_lshl_b32 s36, s35, 8
    s_lshl_b32 s37, s34, 7
    s_add_u32 s36, s36, s37
    s_add_u32 s36, s36, {L_CS}
    v_lshl_add_u32 v{vT2}, v{vHH}, 4, s36        ; (64wn+32nb0+4hh)*4
    v_xor_b32 v{vWA[0]}, 0x80, v{vT2}            ; slot 1
    ds_read_b32 v20, v{vT}
    ds_read_b32 v21, v{vT} offset:128
    ds_read_b32 v22, v{vT} offset:512
    ds_read_b32 v23, v{vT} offset:640
    """)
    for i in range(2):
        for aa in range(4):
            a(f"ds_read_b128 {vr(EP+16*i+4*aa,4)}, v{vT2 if i == 0 else vWA[0]} offset:{32*aa}")
    a(f"""
    s_cmp_lt_u32 s33, 5
    s_cselect_b32 s36, {f32(QSCALE)}, 1.0
    s_waitcnt lgkmcnt(0)
    v_mul_f32 v22, s36, v22
    v_mul_f32 v23, s36, v23
    """)
    n = 0
    for mb in range(2):
        for i in range(2):
            for aa in range(4):
                dst = FR + 2 * n; n += 1
                d = ACC + 16 * (2 * i + mb) + 4 * aa
                for b in range(4):
                    a(f"v_fma_f32 v{d+b}, -v{20+mb}, v{EP+16*i+4*aa+b}, v{d+b}")
                for b in range(4):
                    a(f"v_mul_f32 v{d+b}, v{22+mb}, v{d+b}")
                a(f"v_cvt_pk_bf16_f32 v{dst}, v{d}, v{d+1}")
                a(f"v_cvt_pk_bf16_f32 v{dst+1}, v{d+2}, v{d+3}")
                a(f"buffer_store_dwordx2 {vr(dst,2)}, v{vEA+i*4+aa}, s[16:19], s{44+mb} offen {STF}")
    a.exit(0)
    a.label("K1_MF_V")
    a(f"""
    s_sub_u32 s36, s33, 10
    s_lshl_b32 s36, s36, 7
    s_lshl_b32 s37, s35, 6
    s_add_u32 s36, s36, s37
    s_lshl_b32 s37, s32, 2
    s_lshl_b32 s38, s34, 1
    s_add_u32 s37, s37, s38              ; tile0
    s_mul_i32 s44, s37, {KV_TILE}
    s_add_u32 s44, s44, {WS_KV+1280}
    s_mov_b32 s37, {KV_HEAD}
    """)
    for i in range(2):
        e = vEA + i
        a(f"""
        s_lshl_b32 s38, s{snb[i]}, 5
        s_add_u32 s38, s38, s36
        v_add_u32 v20, s38, v{vM}               ; c
        v_mul_u32_u24 v21, 3277, v20
        v_lshrrev_b32 v21, 16, v21              ; h = c/20
        v_mul_u32_u24 v22, 20, v21
        v_sub_u32 v20, v20, v22                 ; d
        v_mul_lo_u32 v{e}, v21, s37
        v_lshl_add_u32 v{e}, v20, 4, v{e}
        v_mul_u32_u24 v22, 320, v{vHH}
        v_add_u32 v{e}, v{e}, v22
        """)
    mainloop(True)
    a(f"""
    s_lshl_b32 s36, s35, 8
    s_lshl_b32 s37, s34, 7
    s_add_u32 s36, s36, s37
    s_add_u32 s36, s36, {L_CS}
    v_lshl_add_u32 v{vT}, v{vM}, 2, s36          ; (64wn+32nb0+n)*4
    v_xor_b32 v{vWA[0]}, 0x80, v{vT}
    s_lshl_b32 s36, s34, 8
    s_add_u32 s36, s36, {L_RINV}
    v_lshl_add_u32 v{vT2}, v{vHH}, 4, s36        ; (64wm+4hh)*4
    ds_read_b32 v20, v{vT}
    ds_read_b32 v21, v{vWA[0]}
    """)
    for mb in range(2):
        for aa in range(4):
            a(f"ds_read_b128 {vr(EP+16*mb+4*aa,4)}, v{vT2} offset:{128*mb+32*aa}")
            a(f"ds_read_b128 {vr(FR+16*mb+4*aa,4)}, v{vT2} offset:{512+128*mb+32*aa}")
    a("s_waitcnt lgkmcnt(0)")
    for mb in range(2):
        for i in range(2):
            for j in range(2):
                d = ACC + 16 * (2 * mb + i) + 8 * j
                for e in range(8):
                    a(f"v_mul_f32 v{d+e}, v{EP+16*mb+8*j+e}, v{d+e}")
                for e in range(8):
                    a(f"v_fma_f32 v{d+e}, -v{FR+16*mb+8*j+e}, v{20+i}, v{d+e}")
                for e in range(4):
                    a(f"v_cvt_pk_bf16_f32 v{d+e}, v{d+2*e}, v{d+2*e+1}")
                a(f"buffer_store_dwordx4 {vr(d,4)}, v{vEA+i}, s[16:19], s44 offen offset:{mb*KV_TILE+j*640} {STF}")
    a.exit(0)
    a.label("K1_END")
    a("s_endpgm")
    return a.text(), kernel_desc("k1_kernel", 160), f"; @launch kernel=k1_kernel grid=(256,1,1) block=(768,1,1) lds={K1_LDS}"
```

```python
from asmlib import *
from layout import *
from k1 import srd
import os
ABL = os.environ.get('ABL', '')

LT = KV_TILE + 16
LCH = 8 * LT
L_PROG = 4 * LCH
L_ATT_END = L_PROG + 64
K2_LDS = L_ATT_END
VMASK = "0x000fffff"

def gen_attn(a):
    Q = [4, 10]
    AD = [[16, 17, 18, 19], [20, 21, 22, 23]]
    vT, vT2, vPW, vPR, vPV = 24, 25, 26, 27, 28
    vHH, vM, vVG, vL16, vKB0 = 29, 30, 31, 2, 3
    P = 32
    KF = [40, 46]
    VF = [52, 60]
    SS = [68, 84]
    O = [100, 116]
    a(f"""
    v_and_b32 v{vM}, 31, v1
    v_lshrrev_b32 v{vHH}, 5, v1
    v_lshlrev_b32 v{vL16}, 4, v1
    s_lshr_b32 s34, s3, 2
    s_and_b32 s35, s3, 3                  ; q group
    ; DMA: wave w loads global tile 32*(w/4) + 4c + (w%4) into tile slot w of chunk c
    s_lshl_b32 s40, s34, 5
    s_add_u32 s40, s40, s35
    s_mul_i32 s40, s40, {KV_TILE}
    s_mul_i32 s41, s32, {KV_HEAD}
    s_add_u32 s40, s40, s41
    s_add_u32 s40, s40, {WS_KV}
    s_mul_i32 s41, s3, {LT}
    s_mov_b32 s46, {VMASK}
    s_mov_b32 s47, {VMASK}
    """)
    def dma(c):
        a(f"""
        s_add_u32 m0, s41, {(c % 4) * LCH}
        s_mov_b64 exec, 0xffffffff
        buffer_load_dwordx4 v{vL16}, s[16:19], s40 offen offset:2048 lds
        s_mov_b64 exec, -1
        buffer_load_dwordx4 v{vL16}, s[16:19], s40 offen lds
        buffer_load_dwordx4 v{vL16}, s[16:19], s40 offen offset:1024 lds
        s_add_u32 s40, s40, {4 * KV_TILE}
        """)
    dma(0)
    a(f"""
    v_mul_u32_u24 v{vT}, 1280, v{vM}
    v_lshl_add_u32 v{vT2}, v{vHH}, 4, v{vT}
    s_lshl_b32 s36, s33, 3
    s_lshl_b32 s37, s35, 1
    s_add_u32 s36, s36, s37
    s_add_u32 s48, s36, s34
    s_xor_b32 s49, s48, 1
    s_mul_i32 s38, s32, 40
    s_add_u32 s38, s38, {WS_Q}
    """)
    for i in range(2):
        a(f"""
        s_mul_i32 s37, s{48+i}, {32*1280}
        s_add_u32 s37, s37, s38
        buffer_load_dwordx4 {vr(Q[i],4)}, v{vT2}, s[16:19], s37 offen
        buffer_load_dwordx2 {vr(Q[i]+4,2)}, v{vT}, s[16:19], s37 offen offset:32
        """)
    dma(1)
    KA, KB, VA, VB = AD[0]
    a(f"""
    v_lshlrev_b32 v{vKB0}, 3, v{vM}
    v_add_u32 v{vKB0}, 1024, v{vKB0}
    v_mul_u32_u24 v{vVG}, 320, v{vHH}
    v_lshl_add_u32 v{vVG}, v{vM}, 4, v{vVG}
    v_add_u32 v{vVG}, 1280, v{vVG}
    v_mov_b32 v{KA}, v{vL16}
    v_mov_b32 v{KB}, {KV_TILE}
    v_mov_b32 v{VA}, {KV_TILE}
    v_mov_b32 v{VB}, {KV_TILE}
    s_mov_b64 exec, s[46:47]
    v_mov_b32 v{VA}, v{vVG}
    v_add_u32 v{VB}, 640, v{vVG}
    s_mov_b64 exec, 0xffffffff
    v_mov_b32 v{KB}, v{vKB0}
    s_mov_b64 exec, -1
    s_lshl_b32 s36, s3, 2
    s_add_u32 s36, s36, {L_PROG}
    v_mov_b32 v{vPW}, s36
    v_and_b32 v{vPR}, 7, v1
    v_lshlrev_b32 v{vPR}, 2, v{vPR}
    v_add_u32 v{vPR}, {L_PROG}, v{vPR}
    v_mov_b32 v{vPV}, 0
    """)
    for b in range(2):
        for i in range(8):
            a(f"v_mov_b32 v{VF[b]+i}, 0x3f803f80")
    for b in range(2):
        for i in range(16):
            a(f"v_mov_b32 v{O[b]+i}, 0")
    for i in range(8):
        a(f"v_mov_b32 v{P+i}, 0")
    a(f"""
    ds_write_b32 v{vPW}, v{vPV}
    s_cmp_lg_u32 s3, 0
    s_cbranch_scc1 K2_NOZ
    v_mul_u32_u24 v{vT}, {LT}, v{vM}
    ds_write_b128 v{vT}, {vr(VF[0],4)} offset:{KV_TILE}
    """)
    a.label("K2_NOZ")
    a(f"""
    s_waitcnt vmcnt(3) lgkmcnt(0)
    s_barrier
    """)
    a.ts_mark(1)
    def off(kt):
        c = kt // 4
        return (c % 4) // 2, (c % 2) * LCH + (kt % 4) * LT
    def rdK(kt):
        h, o = off(kt)
        a(f"ds_read_b128 {vr(KF[kt%2],4)}, v{AD[h][0]} offset:{o}")
        a(f"ds_read_b64 {vr(KF[kt%2]+4,2)}, v{AD[h][1]} offset:{o}")
    def rdV(kt):
        h, o = off(kt)
        a(f"ds_read_b128 {vr(VF[kt%2],4)}, v{AD[h][2]} offset:{o}")
        a(f"ds_read_b128 {vr(VF[kt%2]+4,4)}, v{AD[h][3]} offset:{o}")
    def qka(sb, kb, q):
        a(f"v_mfma_f32_32x32x16_bf16 {vr(SS[sb],16)}, {vr(KF[kb],4)}, {vr(Q[q],4)}, 0")
    def qkb(sb, kb, q):
        a(f"v_mfma_f32_32x32x8_bf16 {vr(SS[sb],16)}, {vr(KF[kb]+4,2)}, {vr(Q[q]+4,2)}, {vr(SS[sb],16)}")
    def pv(vb, j, q):
        a(f"v_mfma_f32_32x32x16_bf16 {vr(O[q],16)}, {vr(VF[vb]+4*j,4)}, {vr(P+4*j,4)}, {vr(O[q],16)}")
    def rowmax(s, dst, tmp, extra=None):
        a(f"v_max3_f32 v{dst}, v{s}, v{s+1}, v{s+2 if extra is None else extra}")
        lo = 3 if extra is None else 2
        for i in range(lo, 15, 2):
            a(f"v_max3_f32 v{dst}, v{dst}, v{s+i}, v{s+i+1}")
        if extra is None:
            a(f"v_max_f32 v{dst}, v{dst}, v{s+15}")
        a(f"""
        v_mov_b32 v{tmp}, v{dst}
        s_nop 1
        v_permlane32_swap_b32 v{dst}, v{tmp}
        v_max_f32 v{dst}, v{dst}, v{tmp}
        """)
    a(f"ds_read_b128 {vr(KF[1],4)}, v{KA}")
    a(f"ds_read_b64 {vr(KF[1]+4,2)}, v{KB}")
    a(f"s_mul_i32 s36, s34, {4*LT}")
    for i in range(4):
        a(f"v_add_u32 v{AD[0][i]}, s36, v{AD[0][i]}")
    for i in range(4):
        a(f"v_add_u32 v{AD[1][i]}, {2*LCH}, v{AD[0][i]}")
    rdK(0)
    dma(2)
    a(f"""
    s_mov_b32 exec_lo, 0
    v_mov_b32 v{Q[0]+4}, 0
    v_mov_b32 v{Q[0]+5}, 0
    v_mov_b32 v{Q[1]+4}, 0
    v_mov_b32 v{Q[1]+5}, 0
    s_mov_b64 exec, -1
    s_waitcnt lgkmcnt(2)
    """)
    qka(0, 1, 0); qkb(0, 1, 0)
    qka(1, 1, 1); qkb(1, 1, 1)
    rdK(1)
    a("s_nop 10")
    rowmax(SS[0], vT, vT2)
    rowmax(SS[1], P, P + 1)
    a(f"""
    s_mov_b32 exec_lo, 0
    v_cvt_pk_bf16_f32 v{Q[0]+4}, -v{vT}, 0
    v_cvt_pk_bf16_f32 v{Q[1]+4}, -v{P}, 0
    s_mov_b64 exec, -1
    v_mov_b32 v{P}, 0
    v_mov_b32 v{P+1}, 0
    """)
    for i in range(4):
        a(f"v_mov_b32 v{SS[1]+12+i}, 0")
    a("s_waitcnt lgkmcnt(0)")
    qka(0, 0, 0); qkb(0, 0, 0)
    a("s_nop 10")
    if 'm' in ABL: a.ts_mark(1)
    for u in range(64):
        cur, nxt = u % 2, 1 - u % 2
        c, tt = u // 8, u % 8
        s, sp = SS[cur], SS[nxt]
        ex = lambda i: a(f"v_exp_f32 v{s+i}, v{s+i}")
        cv = lambda i: a(f"v_cvt_pk_bf16_f32 v{P+i}, v{s+2*i}, v{s+2*i+1}")
        cvp = lambda i: a(f"v_cvt_pk_bf16_f32 v{P+i}, v{sp+2*i}, v{sp+2*i+1}")
        vprev = ((u - 1) // 2) % 2
        knext = ((u + 1) // 2) % 2
        pv(vprev, 0, nxt)
        if u % 2 == 0:
            rdV(u // 2)
        elif (u - 1) // 2 + 2 < 32:
            rdK((u - 1) // 2 + 2)
        if tt == 4 and c < 7:
            a(f"ds_read_b32 v{vT}, v{vPR}")
        ex(0); ex(1); cvp(6); ex(2); cvp(7); ex(3)
        if u + 1 < 64:
            qka(nxt, knext, nxt)
        if tt == 1 and c < 7:
            a(f"s_waitcnt vmcnt({3 if c + 2 <= 7 else 0})")
            a(f"ds_write_b32 v{vPW}, v{vPV}")
        ex(4); ex(5); cv(0); ex(6); cv(1); ex(7)
        if u + 1 < 64:
            qkb(nxt, knext, nxt)
        ex(8); ex(9); cv(2); ex(10); cv(3); ex(11)
        pv(vprev, 1, nxt)
        a("s_waitcnt lgkmcnt(0)")
        if tt == 0 and c < 7:
            a(f"v_mov_b32 v{vPV}, {c+1}")
        if tt == 4 and c < 7:
            a(f"v_cmp_gt_u32 vcc, {c+1}, v{vT}")
            ex(12)
            a(f"s_cbranch_vccnz K2_SPIN{c}")
            a.label(f"K2_SPUN{c}")
            if c + 3 <= 7 and 'd' not in ABL:
                dma(c + 3)
            ex(13); cv(4); ex(14); cv(5); ex(15)
        else:
            ex(12); ex(13); cv(4); ex(14); cv(5); ex(15)
    sp = SS[1]
    pv(1, 0, 1)
    a(f"v_cvt_pk_bf16_f32 v{P+6}, v{sp+12}, v{sp+13}")
    a(f"v_cvt_pk_bf16_f32 v{P+7}, v{sp+14}, v{sp+15}")
    a(f"v_mov_b32 v{vPV}, 100")
    a(f"s_lshl_b32 s36, s3, 12")
    pv(1, 1, 1)
    a.ts_mark(2)
    a(f"""
    v_add_u32 v{vT2}, s36, v{vL16}
    s_xor_b32 s37, s3, 4
    s_lshl_b32 s37, s37, 2
    s_add_u32 s37, s37, {L_PROG}
    v_mov_b32 v{vPR}, s37
    s_nop 7
    """)
    for i in range(4):
        a(f"ds_write_b128 v{vT2}, {vr(O[1]+4*i,4)} offset:{1024*i}")
    a(f"""
    s_waitcnt lgkmcnt(0)
    ds_write_b32 v{vPW}, v{vPV}
    v_xor_b32 v{vT2}, 0x4000, v{vT2}
    """)
    a.label("K2_XW")
    a(f"""
    ds_read_b32 v{vT}, v{vPR}
    s_waitcnt lgkmcnt(0)
    v_cmp_gt_u32 vcc, 100, v{vT}
    s_nop 1
    s_cbranch_vccz K2_XOK
    s_sleep 1
    s_branch K2_XW
    """)
    a.label("K2_XOK")
    Oo = O[0]
    for i in range(4):
        a(f"ds_read_b128 {vr(O[1]+4*i,4)}, v{vT2} offset:{1024*i}")
    for i in range(4):
        a(f"s_waitcnt lgkmcnt({3-i})")
        for e in range(4):
            a(f"v_add_f32 v{Oo+4*i+e}, v{Oo+4*i+e}, v{O[1]+4*i+e}")
    a(f"v_mul_f32 v{vT}, 0, v{Oo}")
    for i in range(1, 12):
        a(f"v_fmac_f32 v{vT}, 0, v{Oo+i}")
    a(f"""
    v_add_f32 v{vT}, v{vT}, v{Oo+12}
    v_cmp_gt_f32 vcc, {f32(2.0**100)}, v{vT}
    s_nop 1
    s_cmp_eq_u64 vcc, exec
    s_cbranch_scc0 K2_SLOW
    """)
    a.label("K2_FIN")
    a(f"""
    v_rcp_f32 v{vT}, v{Oo+12}
    s_mul_i32 s36, s32, 5
    v_add_u32 v{vT2}, s36, v{vHH}
    s_lshl_b32 s36, s48, 10
    s_add_u32 s36, s36, {WS_O}
    """)
    for aa in range(3):
        o = Oo + 4 * aa
        for b in range(4):
            a(f"v_mul_f32 v{o+b}, v{vT}, v{o+b}")
        a(f"""
        v_cvt_pk_bf16_f32 v{P+2*aa}, v{o}, v{o+1}
        v_cvt_pk_bf16_f32 v{P+2*aa+1}, v{o+2}, v{o+3}
        v_add_u32 v{SS[0]}, {2*aa}, v{vT2}            ; k4
        v_lshrrev_b32 v{SS[0]+1}, 2, v{SS[0]}
        v_lshlrev_b32 v{SS[0]+1}, 16, v{SS[0]+1}      ; kstep*65536
        v_and_b32 v{SS[0]+2}, 1, v{SS[0]}
        v_lshl_add_u32 v{SS[0]+1}, v{SS[0]+2}, 9, v{SS[0]+1}
        v_bfe_u32 v{SS[0]+2}, v{SS[0]}, 1, 1
        v_lshl_add_u32 v{SS[0]+1}, v{SS[0]+2}, 3, v{SS[0]+1}
        v_lshl_add_u32 v{SS[0]+4+aa}, v{vM}, 4, v{SS[0]+1}
        """)
        if aa == 2:
            a("s_mov_b64 exec, 0xffffffff")
        a(f"buffer_store_dwordx2 {vr(P+2*aa,2)}, v{SS[0]+4+aa}, s[16:19], s36 offen")
    a("s_mov_b64 exec, -1")
    a.exit(1)
    for c in range(7):
        a.label(f"K2_SPIN{c}")
        a(f"""
        s_sleep 1
        ds_read_b32 v{vT}, v{vPR}
        s_waitcnt lgkmcnt(0)
        v_cmp_gt_u32 vcc, {c+1}, v{vT}
        s_nop 1
        s_cbranch_vccnz K2_SPIN{c}
        s_branch K2_SPUN{c}
        """)
    a.label("K2_SLOW")
    vMX = SS[1]
    a(f"""
    s_mul_i32 s40, s32, {KV_HEAD}
    s_add_u32 s40, s40, {WS_KV}
    s_mov_b32 s43, 0
    v_mov_b32 v{vMX}, 0xff800000
    s_mov_b32 exec_lo, 0
    v_mov_b32 v{Q[0]+4}, 0
    s_mov_b64 exec, -1
    """)
    for i in range(16):
        a(f"v_mov_b32 v{Oo+i}, 0")
    a.label("K2_SLOOP")
    s = SS[0]
    a(f"""
    buffer_load_dwordx4 {vr(KF[0],4)}, v{vL16}, s[16:19], s40 offen
    buffer_load_dwordx2 {vr(KF[0]+4,2)}, v{vKB0}, s[16:19], s40 offen
    s_mov_b64 exec, s[46:47]
    buffer_load_dwordx4 {vr(VF[0],4)}, v{vVG}, s[16:19], s40 offen
    buffer_load_dwordx4 {vr(VF[0]+4,4)}, v{vVG}, s[16:19], s40 offen offset:640
    s_mov_b64 exec, -1
    s_waitcnt vmcnt(0)
    """)
    qka(0, 0, 0)
    qkb(0, 0, 0)
    a("s_nop 15")
    rowmax(s, vT, vT2, vMX)
    a(f"""
    v_sub_f32 v{vT2}, v{vMX}, v{vT}
    v_exp_f32 v{vT2}, v{vT2}                ; alpha
    v_mov_b32 v{vMX}, v{vT}
    """)
    for i in range(16):
        a(f"v_sub_f32 v{s+i}, v{s+i}, v{vT}")
    for i in range(16):
        a(f"v_exp_f32 v{s+i}, v{s+i}")
    for i in range(16):
        a(f"v_mul_f32 v{Oo+i}, v{vT2}, v{Oo+i}")
    for i in range(8):
        a(f"v_cvt_pk_bf16_f32 v{P+i}, v{s+2*i}, v{s+2*i+1}")
    a("s_nop 1")
    pv(0, 0, 0)
    pv(0, 1, 0)
    a(f"""
    s_add_u32 s40, s40, {KV_TILE}
    s_add_u32 s43, s43, 1
    s_nop 15
    s_cmp_lt_u32 s43, 64
    s_cbranch_scc1 K2_SLOOP
    s_branch K2_FIN
    """)

def gen_k2():
    from ffn import gen_ffn
    a = Asm()
    a.raw(".p2align 8")
    a.raw(".type k2_kernel,@function")
    a.label("k2_kernel")
    a(f"""
    s_cmp_ge_u32 s2, 256
    s_cbranch_scc1 K2_END
    """)
    a.ts_start()
    a(f"""
    s_load_dwordx2 s[30:31], s[0:1], 80
    v_lshrrev_b32 v1, 6, v0
    s_and_b32 s34, s2, 7                 ; xcd
    v_readfirstlane_b32 s3, v1           ; wave
    v_and_b32 v1, 63, v0                 ; lane
    s_lshr_b32 s35, s2, 3                ; idx
    s_lshl_b32 s32, s34, 2
    s_lshr_b32 s36, s35, 3
    s_add_u32 s32, s32, s36
    s_and_b32 s33, s35, 7
    s_cmp_ge_u32 s3, 8
    s_cbranch_scc1 K2_FFN
    s_waitcnt lgkmcnt(0)
    """)
    srd(a, 16, 30, WS_END)
    if 'A' in ABL:
        a("s_barrier")
        a("s_endpgm")
    if os.environ.get('APRIO'): a(f"s_setprio {os.environ.get('APRIO')}")
    gen_attn(a)
    a.label("K2_FFN")
    a(f"""
    s_load_dwordx2 s[4:5], s[0:1], 40
    s_load_dwordx2 s[6:7], s[0:1], 56
    s_load_dwordx2 s[8:9], s[0:1], 72
    s_sub_u32 s50, s3, 8
    s_mov_b32 s51, s32
    s_mov_b32 s52, s33
    s_setprio {os.environ.get('FPRIO', '2')}
    s_waitcnt lgkmcnt(0)
    """)
    srd(a, 16, 30, WS_END)
    srd(a, 56, 4, F * 2)
    srd(a, 60, 6, D * 2)
    srd(a, 64, 8, 256)
    if 'F' in ABL:
        a("s_barrier")
        a("s_endpgm")
    lds = gen_ffn(a, L_ATT_END, 1)
    a.label("K2_END")
    a("s_endpgm")
    return a.text(), kernel_desc("k2_kernel", 168), f"; @launch kernel=k2_kernel grid=(256,1,1) block=(768,1,1) lds={lds}"
```

```python
from asmlib import *
from layout import *
import gemm
from gemm import G, KLoop
from k1 import srd
import os
ABL = os.environ.get('ABL', '')

def gen_k3():
    a = Asm()
    a.raw(".p2align 8")
    a.raw(".type k3_kernel,@function")
    a.label("k3_kernel")
    a(f"""
    s_cmp_ge_u32 s2, 256
    s_cbranch_scc1 K3_END
    """)
    a.ts_start()
    a(f"""
    s_load_dwordx2 s[30:31], s[0:1], 80
    s_load_dwordx2 s[4:5], s[0:1], 0
    s_load_dwordx2 s[6:7], s[0:1], 64
    v_lshrrev_b32 v1, 6, v0
    s_and_b32 s34, s2, 7                 ; xcd
    v_readfirstlane_b32 s3, v1           ; wave j
    v_and_b32 v1, 63, v0                 ; lane
    s_lshr_b32 s35, s2, 3                ; idx
    s_lshl_b32 s51, s34, 2
    s_lshr_b32 s36, s35, 3
    s_add_u32 s51, s51, s36
    s_and_b32 s52, s35, 7
    s_mov_b32 s50, s3
    """)
    NS = 6
    g = G(2, 12 + 20 * NS + 24, 12, NS, 64, 0, "K3")
    EX = 12 + 20 * NS
    gemm.setup(a, g, 50)
    a(f"""
    s_lshl_b32 s53, s51, 11               ; 2r*1024
    s_mul_i32 s54, s52, 3
    s_lshl_b32 s36, s52, 1
    s_add_u32 s36, s36, 4
    s_cmp_lt_u32 s52, 4
    s_cselect_b32 s54, s54, s36
    s_mul_i32 s70, s50, {10*65536}
    s_add_u32 s70, s70, s53
    s_add_u32 s70, s70, {WS_O}
    s_mul_i32 s71, s50, {10*20}
    s_add_u32 s71, s71, s54
    s_lshl_b32 s71, s71, 10
    s_add_u32 s71, s71, {WS_WOF}
    s_lshr_b32 s36, s50, 1
    s_and_b32 s37, s50, 1
    s_lshl_b32 s55, s36, 10
    s_add_u32 s55, s55, s53
    s_lshl_b32 s38, s37, 16
    s_add_u32 s55, s55, s38
    s_lshl_b32 s38, s54, 17
    s_add_u32 s55, s55, s38
    s_add_u32 s55, s55, {WS_Y}
    s_lshl_b32 s56, s51, 1
    s_add_u32 s56, s56, s36
    s_mul_i32 s56, s56, {32*1280}
    s_lshl_b32 s38, s54, 6
    s_add_u32 s56, s56, s38
    s_lshl_b32 s38, s37, 5
    s_add_u32 s56, s56, s38
    v_and_b32 v{g.vT}, 31, v1
    v_mul_u32_u24 v{g.vPV}, 1280, v{g.vT}
    v_lshrrev_b32 v{g.vT}, 5, v1
    v_lshl_add_u32 v{g.vPV}, v{g.vT}, 3, v{g.vPV}      ; m*1280 + hh*8
    s_waitcnt lgkmcnt(0)
    """)
    srd(a, 16, 30, WS_END)
    srd(a, 8, 4, S * D * 2)
    srd(a, 12, 6, S * D * 2)
    a(f"""
    s_cmp_lt_u32 s52, 4
    s_cbranch_scc0 K3_NB2
    """)
    for NB in (3, 2):
        if NB == 2:
            a.label("K3_NB2")
        a.vm_issued = 0
        kl = KLoop(a, g, NB, 10, 70, 71, 65536, 20 * 1024)
        kl.prefetch()
        a("s_mov_b32 s57, s55")
        for nb in range(NB):
            a.vm(f"buffer_load_dwordx4 {vr(EX+8*nb,4)}, v{g.vL16}, s[16:19], s57 offen")
            a(f"s_add_u32 s57, s57, {2*65536}")
            a.vm(f"buffer_load_dwordx2 {vr(EX+8*nb+4,2)}, v{g.vPV}, s[8:11], s56 offen offset:{64*nb}")
            a.vm(f"buffer_load_dwordx2 {vr(EX+8*nb+6,2)}, v{g.vPV}, s[8:11], s56 offen offset:{64*nb+16}")
        kl.run()
        a.ts_mark(1)
        gemm.reduce(a, g, NB, 50, use_barrier=True)
        for nb in range(NB):
            oo = g.acc + 32 * nb
            gemm.add_bias(a, oo, EX + 8 * nb + 4, oo + 8)
            gemm.add_bias(a, oo, EX + 8 * nb, oo + 8)
            gemm.pack8(a, oo, oo + 16)
            a(f"buffer_store_dwordx2 {vr(oo+16,2)}, v{g.vPV}, s[12:15], s56 offen offset:{64*nb}")
            a(f"buffer_store_dwordx2 {vr(oo+18,2)}, v{g.vPV}, s[12:15], s56 offen offset:{64*nb+16}")
        a.exit(2)
    a.label("K3_END")
    a("s_endpgm")
    return a.text(), kernel_desc("k3_kernel", g.acc + 96), f"; @launch kernel=k3_kernel grid=(256,1,1) block=(256,1,1) lds={64 + 4*18432}"
```

```python
S, D, H, DH, F = 2048, 640, 32, 20, 1728
WS_Q   = 0
WS_KV  = WS_Q + S * D * 2
KV_TILE = 2560
KV_HEAD = 64 * KV_TILE
WS_XN  = WS_KV + H * KV_HEAD
WS_W1F = WS_XN + 40 * 64 * 1024
WS_W2F = WS_W1F + 40 * 56 * 1024
WS_WOF = WS_W2F + 108 * 20 * 1024
WS_H   = WS_WOF + 40 * 20 * 1024
WS_O   = WS_H + 112 * 64 * 1024
WS_Y   = WS_O + 40 * 64 * 1024
WS_FLAG = WS_Y + S * D * 2
WS_STAT = WS_FLAG + 32768
WS_TS = WS_FLAG + 65536
WS_END = WS_TS + 8 * 131072
QSCALE = (DH ** -0.5) * 1.4426950408889634
```

```python
import sys
from k1 import gen_k1
from k2 import gen_k2
from k3 import gen_k3
def build(parts, path):
    hdr = open("parallel_sum__mha_block__dense_activation_gelu__prompt.s.ref").read().split("; Override launch")[0]
    s = hdr
    for p in parts:
        s += p[2] + "\n"
    s += '.amdgcn_target "amdgcn-amd-amdhsa--gfx950"\n.text\n'
    seen = set()
    for p in parts:
        if p[1] in seen: continue
        s += p[0]
        seen.add(p[1])
    s += '.section .rodata,"a"\n'
    seen = set()
    for p in parts:
        if p[1] in seen: continue
        seen.add(p[1])
        s += ".p2align 6\n" + p[1]
    open(path, "w").write(s)
if __name__ == "__main__":
    import asmlib
    if "--ts" in sys.argv:
        asmlib.Asm.TS = True
        sys.argv.remove("--ts")
    out = sys.argv[1] if len(sys.argv) > 1 else "out.s"
    build([gen_k1(), gen_k2(), gen_k3()], out)
```

```python
from asmlib import *
from layout import *
import gemm
from gemm import G, KLoop
from k1 import srd
import os
ABL = os.environ.get('ABL', '')

def gen_ffn(a, lds_base, kidx):
    L_PROG = lds_base
    L_CNT = lds_base + 16
    L_RED = lds_base + 64
    g = G(2, 72, 12, 3, L_RED, L_PROG, "FF")
    gemm.setup(a, g, 50)
    a(f"""
    v_mov_b32 v{g.vT}, {L_CNT}
    ds_write_b32 v{g.vT}, v{g.vPV}
    s_lshl_b32 s53, s51, 11               ; 2r*1024
    s_lshr_b32 s36, s50, 1
    s_lshl_b32 s36, s36, 10
    s_add_u32 s55, s53, s36               ; (2r+mb)*1024
    s_and_b32 s36, s50, 1
    s_lshl_b32 s37, s36, 16
    s_add_u32 s55, s55, s37               ; + half*65536
    s_lshl_b32 s68, s36, 5
    s_mov_b32 s69, {f32(gemm.C2)}
    s_mul_i32 s54, s52, 7
    s_lshl_b32 s36, s50, 1
    s_add_u32 s54, s54, s36
    s_add_u32 s70, s53, {WS_XN}
    s_lshl_b32 s71, s54, 10
    s_add_u32 s71, s71, {WS_W1F}
    """)
    a.vm_issued = 0
    NS = 5
    SETS = 12; ACC = 104; BI = 92
    toks = {}
    def loads(k):
        b = SETS + 16 * (k % NS)
        a.vm(f"buffer_load_dwordx4 {vr(b,4)}, v{g.vL16}, s[16:19], s70 offen")
        a.vm(f"buffer_load_dwordx4 {vr(b+8,4)}, v{g.vL16}, s[16:19], s71 offen")
        a.vm(f"buffer_load_dwordx4 {vr(b+4,4)}, v{g.vL16}, s[16:19], s70 offen offset:1024")
        toks[k] = a.vm(f"buffer_load_dwordx4 {vr(b+12,4)}, v{g.vL16}, s[16:19], s71 offen offset:1024")
        if k + 1 < 40:
            a("s_add_u32 s70, s70, 65536")
            a(f"s_add_u32 s71, s71, {56*1024}")
    for k in range(NS - 1):
        loads(k)
    a("s_waitcnt lgkmcnt(0)")
    a("s_barrier")
    vBO, vC1 = BI + 8, BI + 9
    bt = None
    for k in range(40):
        b = SETS + 16 * (k % NS)
        a.wait_vm(toks[k])
        for i, (nb, mb) in enumerate(((0, 0), (0, 1), (1, 0), (1, 1))):
            d = ACC + 32 * nb + 16 * mb
            a(f"v_mfma_f32_32x32x16_bf16 {vr(d,16)}, {vr(b+8+4*nb,4)}, {vr(b+4*mb,4)}, {vr(d,16) if k else '0'}")
            if i == 0 and k + NS - 1 < 40:
                loads(k + NS - 1)
        if k == 36:
            a(f"""
            v_lshrrev_b32 v{vBO}, 5, v1
            v_lshlrev_b32 v{vBO}, 3, v{vBO}
            s_lshl_b32 s72, s54, 6
            v_mov_b32 v{vC1}, {f32(gemm.C1)}
            """)
            for q in range(8):
                bt = a.vm(f"buffer_load_dwordx2 {vr(SETS+2*q,2)}, v{vBO}, s[56:59], s72 offen offset:{16*q}")
    a(f"""
    s_lshl_b32 s73, s54, 17
    s_add_u32 s73, s73, s53
    s_add_u32 s73, s73, {WS_H}
    s_nop 7
    """)
    a.wait_vm(bt)
    T = SETS + 16
    n = 0
    for nb in range(2):
        if nb == 1:
            a("s_cmp_eq_u32 s50, 3")
            a("s_cbranch_scc1 FF1_DONE")
        for half in range(2):
            for mb in range(2):
                oo = ACC + 32 * nb + 16 * mb + 8 * half
                gemm.add_bias(a, oo, SETS + 8 * nb + 4 * half, T)
                gemm.gelu(a, oo, T, 69, vC1)
                dd = T + 8 + 4 * n; n += 1
                gemm.pack8(a, oo, dd)
                a(f"buffer_store_dwordx4 {vr(dd,4)}, v{g.vL16}, s[16:19], s73 offen offset:{1024*mb} sc1")
            a("s_add_u32 s73, s73, 65536")
    a.label("FF1_DONE")
    a.ts_mark(1)
    BI = g.sets + 40
    vBO, vC1 = BI + 12, BI + 13
    a(f"""
    s_mul_i32 s54, s52, 3
    s_lshl_b32 s36, s52, 1
    s_add_u32 s36, s36, 4
    s_cmp_lt_u32 s52, 4
    s_cselect_b32 s54, s54, s36
    s_mul_i32 s70, s50, {27*65536}
    s_add_u32 s70, s70, s53
    s_add_u32 s70, s70, {WS_H}
    s_mul_i32 s71, s50, {27*20}
    s_add_u32 s71, s71, s54
    s_lshl_b32 s71, s71, 10
    s_add_u32 s71, s71, {WS_W2F}
    s_waitcnt vmcnt(0)
    v_mov_b32 v{BI}, {L_CNT}
    v_mov_b32 v{BI+1}, 1
    s_lshl_b32 s36, s51, 8
    s_add_u32 s36, s36, {WS_FLAG}
    v_mov_b32 v{BI+3}, s36
    s_mov_b64 exec, 1
    ds_add_rtn_u32 v{BI+2}, v{BI}, v{BI+1}
    s_waitcnt lgkmcnt(0)
    v_readfirstlane_b32 s36, v{BI+2}
    s_cmp_lg_u32 s36, 3
    s_cbranch_scc1 FF_LWAIT
    buffer_atomic_add v{BI+1}, v{BI+3}, s[16:19], 0 offen sc1
    """)
    a.label("FF_POLL")
    a(f"""
    buffer_load_dword v{BI+2}, v{BI+3}, s[16:19], 0 offen sc1
    s_waitcnt vmcnt(0)
    v_readfirstlane_b32 s36, v{BI+2}
    s_cmp_ge_u32 s36, 8
    s_cbranch_scc1 FF_REL
    s_sleep 4
    s_branch FF_POLL
    """)
    a.label("FF_REL")
    a(f"""
    ds_add_u32 v{BI}, v{BI+1}
    s_branch FF_GO
    """)
    a.label("FF_LWAIT")
    a(f"""
    s_sleep 2
    ds_read_b32 v{BI+2}, v{BI}
    s_waitcnt lgkmcnt(0)
    v_readfirstlane_b32 s36, v{BI+2}
    s_cmp_ge_u32 s36, 5
    s_cbranch_scc0 FF_LWAIT
    """)
    a.label("FF_GO")
    a.ts_mark(2)
    a(f"""
    s_mov_b64 exec, -1
    s_cmp_lt_u32 s52, 4
    s_cbranch_scc0 FF2_NB2
    """)
    ph = g.phase
    for NB in (3, 2):
        if NB == 2:
            a.label("FF2_NB2")
            g.nsets = 5; g.acc = 104
        g.phase = ph
        a.vm_issued = 0
        kl = KLoop(a, g, NB, 27, 70, 71, 65536, 20 * 1024, aflag="sc1", setsz=20 if NB == 3 else 16)
        kl.prefetch()
        kl.run()
        a(f"""
        v_lshrrev_b32 v{vBO}, 5, v1
        v_lshlrev_b32 v{vBO}, 3, v{vBO}
        s_lshl_b32 s72, s54, 6
        s_add_u32 s72, s72, s68
        s_lshl_b32 s73, s54, 17
        s_add_u32 s73, s73, s55
        s_add_u32 s73, s73, {WS_Y}
        """)
        bt = [gemm.bias_load(a, BI + 4 * nb, vBO, "s[60:63]", 72, nb) for nb in range(NB)]
        gemm.reduce(a, g, NB, 50)
        for nb in range(NB):
            oo = g.acc + 32 * nb
            a.wait_vm(bt[nb])
            gemm.add_bias(a, oo, BI + 4 * nb, oo + 8)
            gemm.pack8(a, oo, oo + 16)
            a.vm(f"buffer_store_dwordx4 {vr(oo+16,4)}, v{g.vL16}, s[16:19], s73 offen")
            if nb + 1 < NB:
                a(f"s_add_u32 s73, s73, {2*65536}")
        a.exit(kidx)
    return L_RED + 4 * 18432
```

```python
from asmlib import *
from layout import *
import os
ABL = os.environ.get('ABL', '')
STF = os.environ.get('STF', '')

NSLOT = 4
L_X = 0
L_W = 65536
L_PREP = 32768
L_MEAN = 131072
L_RINV = L_MEAN + 512
L_MR = L_RINV + 512
L_CS = L_MR + 512
K1_LDS = L_CS + 1024
NPIECE = 1300

def srd(a, d, base, nbytes):
    a(f"s_mov_b32 s{d}, s{base}")
    a(f"s_mov_b32 s{d+1}, s{base+1}")
    a(f"s_mov_b32 s{d+2}, {nbytes}")
    a(f"s_mov_b32 s{d+3}, 0x00020000")

def prep_setup(a, sp, vlane, vG, vtmp):
    a(f"""
    s_movk_i32 s37, 1280
    s_mov_b32 s38, {(1<<20)//5+1}
    s_cmp_lt_u32 s{sp}, 560
    s_cselect_b32 s36, 0, 560
    s_cselect_b32 s37, 3456, s37
    s_cselect_b32 s20, s26, s28
    s_cselect_b32 s21, s27, s29
    s_mov_b32 s22, {640*1728*2}
    s_cselect_b32 s38, {(1<<20)//14+1}, s38
    s_cselect_b32 s39, 14, 5
    s_cmp_lt_u32 s{sp}, 1100
    s_cselect_b32 s36, s36, 1100
    s_cselect_b32 s20, s20, s24
    s_cselect_b32 s21, s21, s25
    s_cselect_b32 s22, s22, {640*640*2}
    s_mov_b32 s23, 0x00020000
    s_sub_u32 s36, s{sp}, s36             ; q
    s_mul_i32 s40, s36, s38
    s_lshr_b32 s40, s40, 20
    s_mul_i32 s41, s40, s39
    s_sub_u32 s36, s36, s41               ; cb
    s_mul_i32 s40, s40, s37
    s_lshl_b32 s40, s40, 4                ; kstep*16*stride
    s_lshl_b32 s36, s36, 8
    s_add_u32 s40, s40, s36               ; + cb*256
    s_lshl_b32 s41, s37, 2                ; 4*stride
    s_lshl_b32 s42, s{sp}, 12
    s_add_u32 s42, s42, {WS_W1F}
    v_lshrrev_b32 v{vtmp}, 2, v{vlane}
    v_and_b32 v{vtmp}, 3, v{vtmp}          ; row = (l/4)%4
    v_mul_lo_u32 v{vG}, v{vtmp}, s37
    v_and_b32 v{vtmp}, 3, v{vlane}
    v_lshl_add_u32 v{vG}, v{vtmp}, 4, v{vG}   ; + (l%4)*16
    v_lshrrev_b32 v{vtmp}, 4, v{vlane}
    v_lshl_add_u32 v{vG}, v{vtmp}, 6, v{vG}   ; + (l/16)*64
    """)

def prep_loads(a, vG, vD):
    for j in range(4):
        a(f"buffer_load_dwordx4 {vr(vD+4*j,4)}, v{vG}, s[20:23], s40 offen")
        if j < 3:
            a("s_add_u32 s40, s40, s41")

def prep_finish(a, vD, vL16, vTR, vG16, vO):
    a("s_waitcnt vmcnt(0)")
    for j in range(4):
        a(f"ds_write_b128 v{vL16}, {vr(vD+4*j,4)} offset:{j*1024}")
    a("s_waitcnt lgkmcnt(0)")
    for nb in range(4):
        for r in range(2):
            a(f"ds_read_b64_tr_b16 {vr(vO+4*nb+2*r,2)}, v{vTR} offset:{r*2048+nb*256}")
    for nb in range(4):
        a(f"s_waitcnt lgkmcnt({6-2*nb})")
        a(f"buffer_store_dwordx4 {vr(vO+4*nb,4)}, v{vG16}, s[16:19], s42 offen offset:{nb*1024} {STF}")

def tr_pattern(a, vD, vlane, vtmp, hh_mul):
    a(f"""
    v_lshrrev_b32 v{vtmp}, 5, v{vlane}
    v_mul_u32_u24 v{vD}, {hh_mul}, v{vtmp}
    v_bfe_u32 v{vtmp}, v{vlane}, 2, 2
    v_lshl_add_u32 v{vD}, v{vtmp}, 6, v{vD}
    v_bfe_u32 v{vtmp}, v{vlane}, 4, 1
    v_lshl_add_u32 v{vD}, v{vtmp}, 5, v{vD}
    v_and_b32 v{vtmp}, 3, v{vlane}
    v_lshl_add_u32 v{vD}, v{vtmp}, 3, v{vD}
    """)

def bf16r(a, v):
    a(f"v_cvt_pk_bf16_f32 v{v}, v{v}, v{v}")
    a(f"v_and_b32 v{v}, 0xffff0000, v{v}")

ABL = os.environ.get('ABL', '')
STF = os.environ.get('STF', '')
def gen_k1():
    a = Asm()
    a.raw(".p2align 8")
    a.raw(".type k1_kernel,@function")
    a.label("k1_kernel")
    a(f"""
    s_cmp_ge_u32 s2, 256
    s_cbranch_scc1 K1_END
    """)
    a.ts_start()
    a(f"""
    s_load_dwordx4 s[4:7], s[0:1], 0
    s_load_dwordx2 s[30:31], s[0:1], 80
    s_load_dwordx2 s[24:25], s[0:1], 16
    s_load_dwordx2 s[26:27], s[0:1], 32
    s_load_dwordx2 s[28:29], s[0:1], 48
    v_lshrrev_b32 v1, 6, v0
    s_and_b32 s34, s2, 7                 ; xcd
    v_readfirstlane_b32 s3, v1           ; wave
    v_and_b32 v1, 63, v0                 ; lane
    s_lshr_b32 s35, s2, 3                ; idx
    s_and_b32 s32, s34, 3
    s_lshl_b32 s32, s32, 2               ; mgroup*4
    s_and_b32 s36, s35, 3
    s_add_u32 s32, s32, s36              ; mt
    s_lshr_b32 s33, s35, 2               ; 0..7
    s_lshr_b32 s36, s34, 2               ; ngroup
    s_sub_u32 s33, s33, s36
    s_and_b32 s33, s33, 7
    s_lshl_b32 s36, s36, 3
    s_add_u32 s33, s33, s36
    s_cmp_eq_u32 s33, 15
    s_cbranch_scc1 K1_STATS
    s_cmp_lt_u32 s3, 4
    s_cbranch_scc1 K1_MFMA
    """)
    vXG = [2, 3]; vWG = 6
    vS, vQ = 8, 10
    vT, vT2, vT3 = 12, 13, 14
    vPG, vP16, vPL, vPTR, vXR = 15, 16, 17, 18, 19
    vXF = 28
    vPD = 36; vPO = 52
    SET = 72
    a(f"""
    s_sub_u32 s34, s3, 4                  ; hw 0..7
    ; x global offsets: row = 128mt + 16hw + 8j + l/8 ; chunk = (l%8) ^ ((row>>1)&7) , (row>>1)&7 = (4j + l/16)&7
    v_lshrrev_b32 v{vT}, 3, v1
    v_and_b32 v{vT2}, 7, v1
    v_lshrrev_b32 v{vT3}, 4, v1
    v_xor_b32 v{vT2}, v{vT2}, v{vT3}
    v_mul_u32_u24 v{vXG[0]}, 1280, v{vT}
    s_lshl_b32 s36, s32, 3
    s_add_u32 s36, s36, s34
    s_mul_i32 s36, s36, {16*1280}
    v_add_u32 v{vXG[0]}, s36, v{vXG[0]}
    v_add_u32 v{vXG[1]}, {8*1280}, v{vXG[0]}
    v_lshl_add_u32 v{vXG[0]}, v{vT2}, 4, v{vXG[0]}
    v_xor_b32 v{vT2}, 4, v{vT2}
    v_lshl_add_u32 v{vXG[1]}, v{vT2}, 4, v{vXG[1]}
    ; W global: row = 64st + 8hw + 4j + (l/4)%4 ; col bytes = 256jt + (l%4)*16 + (l/16)*64
    v_bfe_u32 v{vT}, v1, 2, 2
    v_mul_u32_u24 v{vWG}, 3840, v{vT}
    v_and_b32 v{vT}, 3, v1
    v_lshl_add_u32 v{vWG}, v{vT}, 4, v{vWG}
    v_lshl_add_u32 v{vWG}, v{vT3}, 6, v{vWG}
    s_mul_i32 s46, s34, {8*3840}
    s_lshl_b32 s36, s33, 8
    s_add_u32 s46, s46, s36
    s_mov_b32 s45, 0
    s_lshl_b32 s44, s34, 11
    s_waitcnt lgkmcnt(0)
    """)
    srd(a, 8, 4, S * D * 2)
    srd(a, 12, 6, D * 3 * D * 2)
    srd(a, 16, 30, WS_END)
    toks = {}
    def loads(st):
        slot = st % NSLOT
        if 'L' in ABL and st > 0:
            toks[st] = a.vm_issued
            return
        for j in range(2):
            a(f"s_add_u32 m0, s44, {L_X + slot*16384 + j*1024}")
            a("s_nop 0")
            a.vm(f"buffer_load_dwordx4 v{vXG[j]}, s[8:11], s45 offen lds")
            a(f"s_add_u32 m0, s44, {L_W + slot*16384 + j*1024}")
            a("s_nop 0")
            toks[st] = a.vm(f"buffer_load_dwordx4 v{vWG}, s[12:15], s46 offen lds")
            a(f"s_add_u32 s46, s46, {4*3840 if j < 1 else 60*3840}")
        a("s_add_u32 s45, s45, 128")
    for st in range(NSLOT - 1):
        loads(st)
    for i in range(8):
        a(f"v_mov_b32 v{vXF+i}, 0")
    a(f"""
    v_lshlrev_b32 v{vP16}, 4, v1
    v_and_b32 v{vT3}, 31, v1
    v_bfe_u32 v{vXR}, v{vT3}, 1, 3
    s_and_b32 s36, s34, 1
    s_lshl_b32 s36, s36, 2
    v_xor_b32 v{vXR}, s36, v{vXR}
    v_lshlrev_b32 v{vXR}, 4, v{vXR}
    v_lshl_add_u32 v{vXR}, v{vT3}, 7, v{vXR}
    v_lshrrev_b32 v{vT3}, 5, v1
    v_lshl_add_u32 v{vXR}, v{vT3}, 3, v{vXR}
    s_lshr_b32 s36, s34, 1
    s_lshl_b32 s36, s36, 12
    v_add_u32 v{vXR}, s36, v{vXR}
    """)
    def xf_reads(st):
        a(f"""
        s_cmp_lg_u32 s33, {st}
        s_cbranch_scc1 K1_H_XF{st}
        """)
        for c in range(4):
            a(f"v_xor_b32 v{vT3}, {16*c}, v{vXR}")
            a(f"ds_read_b64 {vr(vXF+2*c,2)}, v{vT3} offset:{(st%NSLOT)*16384}")
        a("s_waitcnt lgkmcnt(0)")
        a.label(f"K1_H_XF{st}")
    for st in range(10):
        a.wait_vm(toks[st])
        a("s_barrier")
        if st + NSLOT - 1 < 10:
            loads(st + NSLOT - 1)
        xf_reads(st)
        if st == 1:
            a(f"""
            s_mul_i32 s47, s32, 15
            s_add_u32 s47, s47, s33
            s_mul_i32 s36, s34, 240
            s_add_u32 s47, s47, s36
            """)
            prep_setup(a, 47, 1, vPG, vT3)
            tr_pattern(a, vPTR, 1, vT3, 1024)
            a(f"""
            s_lshl_b32 s36, s34, 12
            s_add_u32 s36, s36, {L_PREP}
            v_add_u32 v{vPTR}, s36, v{vPTR}
            v_add_u32 v{vPL}, s36, v{vP16}
            """)
    a(f"""
    s_cmp_ge_u32 s47, {NPIECE}
    s_cbranch_scc1 K1_H_NOPL
    """)
    prep_loads(a, vPG, vPD)
    a.label("K1_H_NOPL")
    a(f"""
    s_cmp_lg_u32 s34, 7
    s_cbranch_scc1 K1_H_NOST
    s_load_dwordx2 s[48:49], s[0:1], 72
    s_lshl_b32 s36, s32, 2
    v_mov_b32 v{vT}, s36
    s_waitcnt lgkmcnt(0)
    s_mov_b32 s52, s48
    s_mov_b32 s53, s49
    s_movk_i32 s54, 256
    s_mov_b32 s55, 0x00020000
    """)
    a.label("K1_H_POLL")
    a(f"""
    buffer_load_dword v{vT2}, v{vT}, s[52:55], 0 offen sc1
    s_waitcnt vmcnt(0)
    v_readfirstlane_b32 s36, v{vT2}
    s_cmp_eq_u32 s36, 0
    s_cbranch_scc0 K1_H_GOT
    s_sleep 2
    s_branch K1_H_POLL
    """)
    a.label("K1_H_GOT")
    a(f"""
    s_mul_i32 s36, s32, 1536
    s_add_u32 s36, s36, {WS_STAT}
    v_lshlrev_b32 v{vT}, 3, v1
    buffer_load_dwordx2 {vr(SET,2)}, v{vT}, s[16:19], s36 offen sc1
    buffer_load_dwordx2 {vr(SET+2,2)}, v{vT}, s[16:19], s36 offen offset:512 sc1
    buffer_load_dwordx2 {vr(SET+4,2)}, v{vT}, s[16:19], s36 offen offset:1024 sc1
    v_add_u32 v{vT}, {L_MEAN}, v{vT}
    s_waitcnt vmcnt(0)
    ds_write_b64 v{vT}, {vr(SET,2)}
    ds_write_b64 v{vT}, {vr(SET+2,2)} offset:512
    ds_write_b64 v{vT}, {vr(SET+4,2)} offset:1024
    s_waitcnt lgkmcnt(0)
    """)
    a.label("K1_H_NOST")
    a(f"""
    s_barrier
    s_cmp_ge_u32 s33, 10
    s_cbranch_scc1 K1_H_NOXN
    v_and_b32 v{vT}, 31, v1
    s_lshr_b32 s36, s34, 1
    s_lshl_b32 s37, s36, 7
    s_add_u32 s37, s37, {L_MEAN}
    v_lshl_add_u32 v{vT}, v{vT}, 2, s37          ; (32(hw/2) + m)*4
    ds_read_b32 v{vS}, v{vT}                     ; mean
    ds_read_b32 v{vQ}, v{vT} offset:512          ; rinv
    ; dst: kstep = 4jt + 2(hw%2) + s ; mblock = 4mt + hw/2
    s_lshl_b32 s37, s32, 2
    s_add_u32 s37, s37, s36
    s_lshl_b32 s37, s37, 10
    s_lshl_b32 s36, s33, 1
    s_and_b32 s38, s34, 1
    s_add_u32 s36, s36, s38
    s_lshl_b32 s36, s36, 17
    s_add_u32 s36, s36, s37
    s_add_u32 s36, s36, {WS_XN}
    s_waitcnt lgkmcnt(0)
    """)
    for s in range(2):
        o = SET + 16 * s
        for i in range(4):
            x = vXF + 4 * s + i
            a(f"v_lshlrev_b32 v{o+2*i}, 16, v{x}")
            a(f"v_and_b32 v{o+2*i+1}, 0xffff0000, v{x}")
        for i in range(8):
            a(f"v_sub_f32 v{o+i}, v{o+i}, v{vS}")
        for i in range(4):
            a(f"v_cvt_pk_bf16_f32 v{o+8+i}, v{o+2*i}, v{o+2*i+1}")
        for i in range(4):
            a(f"v_lshlrev_b32 v{o+2*i}, 16, v{o+8+i}")
            a(f"v_and_b32 v{o+2*i+1}, 0xffff0000, v{o+8+i}")
        for i in range(8):
            a(f"v_mul_f32 v{o+i}, v{o+i}, v{vQ}")
        for i in range(4):
            a(f"v_cvt_pk_bf16_f32 v{o+8+i}, v{o+2*i}, v{o+2*i+1}")
        a(f"buffer_store_dwordx4 {vr(o+8,4)}, v{vP16}, s[16:19], s36 offen {STF}")
        a(f"s_add_u32 s36, s36, 65536")
    a.label("K1_H_NOXN")
    a(f"""
    s_cmp_ge_u32 s47, {NPIECE}
    s_cbranch_scc1 K1_EXIT
    """)
    prep_finish(a, vPD, vPL, vPTR, vP16, vPO)
    a.label("K1_EXIT")
    a.exit(0)

    a.label("K1_STATS")
    XR = 16
    a(f"""
    s_cmp_ge_u32 s3, 8
    s_cbranch_scc1 K1_END
    s_load_dwordx2 s[48:49], s[0:1], 72
    v_lshrrev_b32 v2, 3, v1
    v_and_b32 v3, 7, v1
    v_mul_u32_u24 v4, 1280, v2
    v_lshl_add_u32 v4, v3, 4, v4
    s_lshl_b32 s36, s32, 3
    s_add_u32 s36, s36, s3
    s_mul_i32 s36, s36, {16*1280}
    s_add_u32 s37, s36, {8*1280}
    s_waitcnt lgkmcnt(0)
    """)
    srd(a, 8, 4, S * D * 2)
    srd(a, 16, 30, WS_END)
    srd(a, 52, 48, 256)
    a.vm_issued = 0
    tk = {}
    for g in range(2):
        for i in range(10):
            tk[(g, i)] = a.vm(f"buffer_load_dwordx4 {vr(XR+40*g+4*i,4)}, v4, s[8:11], s{36+g} offen offset:{128*i}")
    vS, vQ = 8, 10
    for i in range(4):
        a(f"v_mov_b32 v{vS+i}, 0")
    a("s_mov_b32 s38, 0x3f803f80")
    for g in range(2):
        for i in range(10):
            a.wait_vm(tk[(g, i)])
            for e in range(4):
                r = XR + 40 * g + 4 * i + e
                a(f"v_dot2c_f32_bf16 v{vS+g}, s38, v{r}")
                a(f"v_dot2c_f32_bf16 v{vQ+g}, v{r}, v{r}")
    a("s_nop 3")
    dpp = "row_mask:0xf bank_mask:0xf"
    for pat in ("quad_perm:[1,0,3,2]", "quad_perm:[2,3,0,1]", "row_half_mirror"):
        for i in range(4):
            a(f"v_add_f32_dpp v{vS+i}, v{vS+i}, v{vS+i} {pat} {dpp}")
    a(f"s_mov_b32 s36, {f32(1.0/640)}")
    for j in range(2):
        a(f"v_mul_f32 v{vS+j}, s36, v{vS+j}")
        a(f"v_mul_f32 v{vQ+j}, s36, v{vQ+j}")
    for j in range(2):
        a(f"v_fma_f32 v{vQ+j}, -v{vS+j}, v{vS+j}, v{vQ+j}")
    for j in range(2):
        a(f"v_max_f32 v{vQ+j}, 0, v{vQ+j}")
    for j in range(2):
        bf16r(a, vS + j)
        bf16r(a, vQ + j)
    for j in range(2):
        a(f"v_add_f32 v{vQ+j}, {f32(1e-5)}, v{vQ+j}")
    for j in range(2):
        bf16r(a, vQ + j)
    for j in range(2):
        a(f"v_sqrt_f32 v{vQ+j}, v{vQ+j}")
    a("s_nop 0")
    for j in range(2):
        bf16r(a, vQ + j)
    for j in range(2):
        a(f"v_rcp_f32 v{vQ+j}, v{vQ+j}")
    a(f"""
    s_mul_i32 s36, s32, 1536
    s_lshl_b32 s37, s3, 6
    s_add_u32 s36, s36, s37
    s_add_u32 s36, s36, {WS_STAT}
    v_lshlrev_b32 v2, 2, v2                      ; (l/8)*4
    v_cmp_eq_u32 vcc, 0, v3
    """)
    for j in range(2):
        a(f"v_mul_f32 v{12+j}, v{vS+j}, v{vQ+j}")
    a("s_and_saveexec_b64 s[40:41], vcc")
    for j in range(2):
        a(f"buffer_store_dword v{vS+j}, v2, s[16:19], s36 offen offset:{32*j} sc1")
        a(f"buffer_store_dword v{vQ+j}, v2, s[16:19], s36 offen offset:{512+32*j} sc1")
        a(f"buffer_store_dword v{12+j}, v2, s[16:19], s36 offen offset:{1024+32*j} sc1")
    a(f"""
    s_mov_b64 exec, s[40:41]
    s_waitcnt vmcnt(0)
    s_barrier
    s_cmp_lg_u32 s3, 0
    s_cbranch_scc1 K1_EXIT
    s_lshl_b32 s36, s32, 2
    v_mov_b32 v2, s36
    v_mov_b32 v3, 1
    s_mov_b64 exec, 1
    buffer_store_dword v3, v2, s[52:55], 0 offen sc1
    s_lshl_b32 s36, s32, 9
    s_add_u32 s36, s36, {WS_FLAG}
    v_mov_b32 v3, 0
    buffer_store_dword v3, v3, s[16:19], s36 offen
    buffer_store_dword v3, v3, s[16:19], s36 offen offset:256
    s_mov_b64 exec, -1
    s_branch K1_EXIT
    """)

    a.label("K1_MFMA")
    ACC = 64
    FR = 32
    vXA = [2, 3, 4, 5]
    vWA = [6, 11]
    vM, vHH, vT, vT2 = 7, 8, 9, 10
    vEA = 12
    vSEL = 24
    vCSA = 28
    EP = 128
    a(f"""
    s_lshr_b32 s34, s3, 1                ; wm
    s_and_b32 s35, s3, 1                 ; wn
    s_xor_b32 s43, s34, 1
    v_and_b32 v{vM}, 31, v1
    v_lshrrev_b32 v{vHH}, 5, v1
    v_bfe_u32 v{vT}, v{vM}, 1, 3
    v_xor_b32 v{vT}, v{vT}, v{vHH}
    v_lshlrev_b32 v{vT}, 4, v{vT}
    v_lshl_add_u32 v{vT}, v{vM}, 7, v{vT}
    s_lshl_b32 s36, s34, 13
    v_add_u32 v{vXA[0]}, s36, v{vT}
    v_xor_b32 v{vXA[1]}, 32, v{vXA[0]}
    v_xor_b32 v{vXA[2]}, 64, v{vXA[0]}
    v_xor_b32 v{vXA[3]}, 0x60, v{vXA[0]}
    ; selector: lane (i=l%16, g=l/16): 1.0 pair if (g%2 == i) else 0
    v_and_b32 v{vT}, 15, v1
    v_bfe_u32 v{vT2}, v1, 4, 1
    v_cmp_eq_u32 vcc, v{vT}, v{vT2}
    v_mov_b32 v{vT}, 0x3f803f80
    s_nop 1
    v_cndmask_b32 v{vSEL}, 0, v{vT}, vcc
    v_cndmask_b32 v{vSEL+1}, 0, v{vT}, vcc
    v_cndmask_b32 v{vSEL+2}, 0, v{vT}, vcc
    v_cndmask_b32 v{vSEL+3}, 0, v{vT}, vcc
    """)
    tr_pattern(a, vWA[0], 1, vT, 2048)
    a(f"""
    s_lshl_b32 s36, s35, 9
    s_add_u32 s36, s36, {L_W}
    s_lshl_b32 s37, s34, 8
    s_add_u32 s36, s36, s37
    v_add_u32 v{vWA[0]}, s36, v{vWA[0]}
    v_xor_b32 v{vWA[1]}, 0x100, v{vWA[0]}
    s_waitcnt lgkmcnt(0)
    """)
    srd(a, 16, 30, WS_END)
    a(f"""
    s_cmp_ge_u32 s33, 10
    s_cbranch_scc1 K1_MF_V
    """)
    snb = [34, 43]
    def read_ops(t):
        st, s = t // 4, t % 4
        slot = st % NSLOT
        f = FR + 16 * (t % 2)
        ops = []
        for r in range(2):
            ops.append(f"ds_read_b64_tr_b16 {vr(f+8+2*r,2)}, v{vWA[0]} offset:{slot*16384+s*4096+r*1024}")
        ops.append(f"ds_read_b128 {vr(f,4)}, v{vXA[s]} offset:{slot*16384}")
        ops.append(f"ds_read_b128 {vr(f+4,4)}, v{vXA[s]} offset:{slot*16384+4096}")
        for r in range(2):
            ops.append(f"ds_read_b64_tr_b16 {vr(f+12+2*r,2)}, v{vWA[1]} offset:{slot*16384+s*4096+r*1024}")
        if 'R' in ABL and t > 1: return []
        return ops
    def mainloop(vtype):
        a("s_barrier")
        if 'E' not in ABL: a.ts_mark(1)
        for o in read_ops(0): a(o)
        for t in range(40):
            a("s_waitcnt lgkmcnt(0)")
            rops = []
            if t + 1 < 40:
                if (t + 1) % 4 == 0:
                    a("s_barrier")
                rops = read_ops(t + 1)
            f = FR + 16 * (t % 2)
            mf = []
            c = vr(vCSA, 4) if t > 0 else "0"
            order = [(0, 0), (0, 1), (1, 0), (1, 1)] if not vtype else [(0, 0), (1, 0), (0, 1), (1, 1)]
            for i, j in order:
                d = ACC + 16 * (2 * i + j)
                cc = vr(d, 16) if t > 0 else "0"
                if not vtype:
                    mf.append(f"v_mfma_f32_32x32x16_bf16 {vr(d,16)}, {vr(f+8+4*i,4)}, {vr(f+4*j,4)}, {cc}")
                else:
                    mf.append(f"v_mfma_f32_32x32x16_bf16 {vr(d,16)}, {vr(f+4*i,4)}, {vr(f+8+4*j,4)}, {cc}")
            mf.insert(3, f"v_mfma_f32_16x16x32_bf16 {vr(vCSA,4)}, {vr(vSEL,4)}, {vr(f+8,4)}, {c}")
            if 'M' in ABL and t > 0: mf = [None] * 5
            for k, m in enumerate(mf):
                if m: a(m)
                for o in rops[2*k:2*k+2]: a(o)
        a.ts_mark(2 if 'E' not in ABL else 1)
        a(f"""
        s_lshl_b32 s36, s35, 8
        s_lshl_b32 s37, s34, 7
        s_add_u32 s36, s36, s37
        s_add_u32 s36, s36, {L_CS}
        v_lshl_add_u32 v{vT}, v1, 2, s36
        s_mov_b64 exec, 0xffff
        s_nop 3
        ds_write_b32 v{vT}, v{vCSA}
        ds_write_b32 v{vT}, v{vCSA+1} offset:64
        s_mov_b64 exec, -1
        s_waitcnt lgkmcnt(0)
        s_barrier
        """)
        if 'E' in ABL: a.ts_mark(2)
    a(f"""
    s_cmp_ge_u32 s33, 5
    s_cbranch_scc1 K1_MF_KADDR
    v_mul_u32_u24 v{vT}, 1280, v{vM}
    v_lshl_add_u32 v{vT}, v{vHH}, 3, v{vT}
    s_lshl_b32 s36, s32, 1
    s_add_u32 s36, s36, s34              ; 2mt+wm
    s_mul_i32 s44, s36, {64*1280}
    s_lshl_b32 s36, s33, 8
    s_add_u32 s44, s44, s36
    s_lshl_b32 s36, s35, 7
    s_add_u32 s44, s44, s36
    s_add_u32 s44, s44, {WS_Q}
    s_add_u32 s45, s44, {32*1280}
    """)
    for i in range(2):
        a(f"s_lshl_b32 s36, s{snb[i]}, 6")
        a(f"v_add_u32 v{vEA+4*i}, s36, v{vT}")
        for aa in range(1, 4):
            a(f"v_add_u32 v{vEA+4*i+aa}, {aa*16}, v{vEA+4*i}")
    a("s_branch K1_MF_QK")
    a.label("K1_MF_KADDR")
    a(f"""
    s_sub_u32 s36, s33, 5
    s_lshl_b32 s36, s36, 5
    s_lshl_b32 s37, s35, 4
    s_add_u32 s36, s36, s37
    s_lshl_b32 s37, s32, 2
    s_lshl_b32 s38, s34, 1
    s_add_u32 s37, s37, s38
    s_mul_i32 s44, s37, {KV_TILE}
    s_add_u32 s44, s44, {WS_KV}
    s_add_u32 s45, s44, {KV_TILE}
    s_mov_b32 s37, {KV_HEAD}
    """)
    for i in range(2):
        a(f"""
        s_lshl_b32 s38, s{snb[i]}, 3
        s_add_u32 s38, s38, s36
        v_add_u32 v{vT2}, s38, v{vHH}
        """)
        for aa in range(4):
            e = vEA + i * 4 + aa
            a(f"""
            v_add_u32 v20, {2*aa}, v{vT2}           ; u
            v_mul_u32_u24 v21, 205, v20
            v_lshrrev_b32 v21, 10, v21              ; h
            v_mul_u32_u24 v22, 5, v21
            v_sub_u32 v20, v20, v22                 ; g
            v_mul_lo_u32 v{e}, v21, s37
            v_lshrrev_b32 v22, 1, v20
            v_lshl_add_u32 v{e}, v22, 9, v{e}
            v_and_b32 v22, 1, v20
            v_lshl_add_u32 v{e}, v22, 3, v{e}
            v_lshrrev_b32 v22, 2, v20
            v_sub_u32 v22, 4, v22
            v_lshlrev_b32 v22, v22, v{vM}
            v_add_u32 v{e}, v{e}, v22
            """)
    a.label("K1_MF_QK")
    mainloop(False)
    a(f"""
    s_lshl_b32 s36, s34, 8
    s_add_u32 s36, s36, {L_MEAN}
    v_lshl_add_u32 v{vT}, v{vM}, 2, s36          ; (64wm+m)*4
    s_lshl_b32 s36, s35, 8
    s_lshl_b32 s37, s34, 7
    s_add_u32 s36, s36, s37
    s_add_u32 s36, s36, {L_CS}
    v_lshl_add_u32 v{vT2}, v{vHH}, 4, s36        ; (64wn+32nb0+4hh)*4
    v_xor_b32 v{vWA[0]}, 0x80, v{vT2}            ; slot 1
    ds_read_b32 v20, v{vT}
    ds_read_b32 v21, v{vT} offset:128
    ds_read_b32 v22, v{vT} offset:512
    ds_read_b32 v23, v{vT} offset:640
    """)
    for i in range(2):
        for aa in range(4):
            a(f"ds_read_b128 {vr(EP+16*i+4*aa,4)}, v{vT2 if i == 0 else vWA[0]} offset:{32*aa}")
    a(f"""
    s_cmp_lt_u32 s33, 5
    s_cselect_b32 s36, {f32(QSCALE)}, 1.0
    s_waitcnt lgkmcnt(0)
    v_mul_f32 v22, s36, v22
    v_mul_f32 v23, s36, v23
    """)
    n = 0
    for mb in range(2):
        for i in range(2):
            for aa in range(4):
                dst = FR + 2 * n; n += 1
                d = ACC + 16 * (2 * i + mb) + 4 * aa
                for b in range(4):
                    a(f"v_fma_f32 v{d+b}, -v{20+mb}, v{EP+16*i+4*aa+b}, v{d+b}")
                for b in range(4):
                    a(f"v_mul_f32 v{d+b}, v{22+mb}, v{d+b}")
                a(f"v_cvt_pk_bf16_f32 v{dst}, v{d}, v{d+1}")
                a(f"v_cvt_pk_bf16_f32 v{dst+1}, v{d+2}, v{d+3}")
                a(f"buffer_store_dwordx2 {vr(dst,2)}, v{vEA+i*4+aa}, s[16:19], s{44+mb} offen {STF}")
    a.exit(0)
    a.label("K1_MF_V")
    a(f"""
    s_sub_u32 s36, s33, 10
    s_lshl_b32 s36, s36, 7
    s_lshl_b32 s37, s35, 6
    s_add_u32 s36, s36, s37
    s_lshl_b32 s37, s32, 2
    s_lshl_b32 s38, s34, 1
    s_add_u32 s37, s37, s38              ; tile0
    s_mul_i32 s44, s37, {KV_TILE}
    s_add_u32 s44, s44, {WS_KV+1280}
    s_mov_b32 s37, {KV_HEAD}
    """)
    for i in range(2):
        e = vEA + i
        a(f"""
        s_lshl_b32 s38, s{snb[i]}, 5
        s_add_u32 s38, s38, s36
        v_add_u32 v20, s38, v{vM}               ; c
        v_mul_u32_u24 v21, 3277, v20
        v_lshrrev_b32 v21, 16, v21              ; h = c/20
        v_mul_u32_u24 v22, 20, v21
        v_sub_u32 v20, v20, v22                 ; d
        v_mul_lo_u32 v{e}, v21, s37
        v_lshl_add_u32 v{e}, v20, 4, v{e}
        v_mul_u32_u24 v22, 320, v{vHH}
        v_add_u32 v{e}, v{e}, v22
        """)
    mainloop(True)
    a(f"""
    s_lshl_b32 s36, s35, 8
    s_lshl_b32 s37, s34, 7
    s_add_u32 s36, s36, s37
    s_add_u32 s36, s36, {L_CS}
    v_lshl_add_u32 v{vT}, v{vM}, 2, s36          ; (64wn+32nb0+n)*4
    v_xor_b32 v{vWA[0]}, 0x80, v{vT}
    s_lshl_b32 s36, s34, 8
    s_add_u32 s36, s36, {L_RINV}
    v_lshl_add_u32 v{vT2}, v{vHH}, 4, s36        ; (64wm+4hh)*4
    ds_read_b32 v20, v{vT}
    ds_read_b32 v21, v{vWA[0]}
    """)
    for mb in range(2):
        for aa in range(4):
            a(f"ds_read_b128 {vr(EP+16*mb+4*aa,4)}, v{vT2} offset:{128*mb+32*aa}")
            a(f"ds_read_b128 {vr(FR+16*mb+4*aa,4)}, v{vT2} offset:{512+128*mb+32*aa}")
    a("s_waitcnt lgkmcnt(0)")
    for mb in range(2):
        for i in range(2):
            for j in range(2):
                d = ACC + 16 * (2 * mb + i) + 8 * j
                for e in range(8):
                    a(f"v_mul_f32 v{d+e}, v{EP+16*mb+8*j+e}, v{d+e}")
                for e in range(8):
                    a(f"v_fma_f32 v{d+e}, -v{FR+16*mb+8*j+e}, v{20+i}, v{d+e}")
                for e in range(4):
                    a(f"v_cvt_pk_bf16_f32 v{d+e}, v{d+2*e}, v{d+2*e+1}")
                a(f"buffer_store_dwordx4 {vr(d,4)}, v{vEA+i}, s[16:19], s44 offen offset:{mb*KV_TILE+j*640} {STF}")
    a.exit(0)
    a.label("K1_END")
    a("s_endpgm")
    return a.text(), kernel_desc("k1_kernel", 160), f"; @launch kernel=k1_kernel grid=(256,1,1) block=(768,1,1) lds={K1_LDS}"
```

```python
from asmlib import *
from layout import *
from k1 import srd
import os
ABL = os.environ.get('ABL', '')

LT = KV_TILE + 16
LCH = 8 * LT
L_PROG = 4 * LCH
L_DUMMY = L_PROG + 64
L_ATT_END = L_DUMMY + 2560
K2_LDS = L_ATT_END
VMASK = "0x000fffff"

def gen_attn(a):
    Q = [4, 10]
    AD = [[16, 17, 18, 19], [20, 21, 22, 23]]
    vT, vT2, vPW, vPR, vPV = 24, 25, 26, 27, 28
    vHH, vM, vVG, vL16, vKB0 = 29, 30, 31, 2, 3
    P = 32
    KF = [40, 46]
    VF = [52, 60]
    SS = [68, 84]
    O = [100, 116]
    vPC, vPD, vPL = 132, 133, 134
    BAL = int(os.environ.get('BAL', '2'))
    a(f"""
    v_and_b32 v{vM}, 31, v1
    v_lshrrev_b32 v{vHH}, 5, v1
    v_lshlrev_b32 v{vL16}, 4, v1
    s_lshr_b32 s34, s3, 2
    s_and_b32 s35, s3, 3                  ; q group
    ; DMA: wave w loads global tile 32*(w/4) + 4c + (w%4) into tile slot w of chunk c
    s_lshl_b32 s40, s34, 5
    s_add_u32 s40, s40, s35
    s_mul_i32 s40, s40, {KV_TILE}
    s_mul_i32 s41, s32, {KV_HEAD}
    s_add_u32 s40, s40, s41
    s_add_u32 s40, s40, {WS_KV}
    s_mul_i32 s41, s3, {LT}
    s_mov_b32 s46, {VMASK}
    s_mov_b32 s47, {VMASK}
    """)
    def dma(c):
        a(f"""
        s_add_u32 m0, s41, {(c % 4) * LCH}
        s_mov_b64 exec, 0xffffffff
        buffer_load_dwordx4 v{vL16}, s[16:19], s40 offen offset:2048 lds
        s_mov_b64 exec, -1
        buffer_load_dwordx4 v{vL16}, s[16:19], s40 offen lds
        buffer_load_dwordx4 v{vL16}, s[16:19], s40 offen offset:1024 lds
        s_add_u32 s40, s40, {4 * KV_TILE}
        """)
    dma(0)
    a(f"""
    v_mul_u32_u24 v{vT}, 1280, v{vM}
    v_lshl_add_u32 v{vT2}, v{vHH}, 4, v{vT}
    s_lshl_b32 s36, s33, 3
    s_lshl_b32 s37, s35, 1
    s_add_u32 s36, s36, s37
    s_add_u32 s48, s36, s34
    s_xor_b32 s49, s48, 1
    s_mul_i32 s38, s32, 40
    s_add_u32 s38, s38, {WS_Q}
    """)
    for i in range(2):
        a(f"""
        s_mul_i32 s37, s{48+i}, {32*1280}
        s_add_u32 s37, s37, s38
        buffer_load_dwordx4 {vr(Q[i],4)}, v{vT2}, s[16:19], s37 offen
        buffer_load_dwordx2 {vr(Q[i]+4,2)}, v{vT}, s[16:19], s37 offen offset:32
        """)
    dma(1)
    KA, KB, VA, VB = AD[0]
    a(f"""
    v_lshlrev_b32 v{vKB0}, 3, v{vM}
    v_add_u32 v{vKB0}, 1024, v{vKB0}
    v_mul_u32_u24 v{vVG}, 320, v{vHH}
    v_lshl_add_u32 v{vVG}, v{vM}, 4, v{vVG}
    v_add_u32 v{vVG}, 1280, v{vVG}
    v_mov_b32 v{KA}, v{vL16}
    v_mov_b32 v{KB}, {KV_TILE}
    v_mov_b32 v{VA}, {KV_TILE}
    v_mov_b32 v{VB}, {KV_TILE}
    s_mov_b64 exec, s[46:47]
    v_mov_b32 v{VA}, v{vVG}
    v_add_u32 v{VB}, 640, v{vVG}
    s_mov_b64 exec, 0xffffffff
    v_mov_b32 v{KB}, v{vKB0}
    s_mov_b64 exec, -1
    s_lshl_b32 s36, s3, 2
    s_add_u32 s36, s36, {L_PROG}
    v_mov_b32 v{vPW}, s36
    v_and_b32 v{vPR}, 7, v1
    v_lshlrev_b32 v{vPR}, 2, v{vPR}
    v_add_u32 v{vPR}, {L_PROG}, v{vPR}
    v_mov_b32 v{vPV}, 0
    s_lshl_b32 s36, s35, 2
    s_add_u32 s36, s36, {L_PROG+32}
    v_mov_b32 v{vPC}, s36
    s_lshl_b32 s45, s34, 1
    s_sub_u32 s45, 1, s45                     ; +1 or -1
    v_mov_b32 v{vPD}, s45
    ds_write_b32 v{vPC}, v{vPV}
    """)
    for b in range(2):
        for i in range(8):
            a(f"v_mov_b32 v{VF[b]+i}, 0x3f803f80")
    for b in range(2):
        for i in range(16):
            a(f"v_mov_b32 v{O[b]+i}, 0")
    for i in range(8):
        a(f"v_mov_b32 v{P+i}, 0")
    a(f"""
    ds_write_b32 v{vPW}, v{vPV}
    s_cmp_lg_u32 s3, 0
    s_cbranch_scc1 K2_NOZ
    v_mul_u32_u24 v{vT}, {LT}, v{vM}
    ds_write_b128 v{vT}, {vr(VF[0],4)} offset:{KV_TILE}
    """)
    a.label("K2_NOZ")
    a(f"""
    s_waitcnt vmcnt(3) lgkmcnt(0)
    s_barrier
    """)
    a.ts_mark(1)
    def rdK(kt):
        h = 0 if kt < 4 else 1
        a(f"ds_read_b128 {vr(KF[kt%2],4)}, v{AD[h][0]} offset:{(kt%4)*LT}")
        a(f"ds_read_b64 {vr(KF[kt%2]+4,2)}, v{AD[h][1]} offset:{(kt%4)*LT}")
    def rdV(kt):
        a(f"ds_read_b128 {vr(VF[kt%2],4)}, v{AD[0][2]} offset:{kt*LT}")
        a(f"ds_read_b128 {vr(VF[kt%2]+4,4)}, v{AD[0][3]} offset:{kt*LT}")
    def qka(sb, kb, q):
        a(f"v_mfma_f32_32x32x16_bf16 {vr(SS[sb],16)}, {vr(KF[kb],4)}, {vr(Q[q],4)}, 0")
    def qkb(sb, kb, q):
        a(f"v_mfma_f32_32x32x8_bf16 {vr(SS[sb],16)}, {vr(KF[kb]+4,2)}, {vr(Q[q]+4,2)}, {vr(SS[sb],16)}")
    def pv(vb, j, q):
        a(f"v_mfma_f32_32x32x16_bf16 {vr(O[q],16)}, {vr(VF[vb]+4*j,4)}, {vr(P+4*j,4)}, {vr(O[q],16)}")
    def rowmax(s, dst, tmp, extra=None):
        a(f"v_max3_f32 v{dst}, v{s}, v{s+1}, v{s+2 if extra is None else extra}")
        lo = 3 if extra is None else 2
        for i in range(lo, 15, 2):
            a(f"v_max3_f32 v{dst}, v{dst}, v{s+i}, v{s+i+1}")
        if extra is None:
            a(f"v_max_f32 v{dst}, v{dst}, v{s+15}")
        a(f"""
        v_mov_b32 v{tmp}, v{dst}
        s_nop 1
        v_permlane32_swap_b32 v{dst}, v{tmp}
        v_max_f32 v{dst}, v{dst}, v{tmp}
        """)
    a(f"ds_read_b128 {vr(KF[1],4)}, v{KA}")
    a(f"ds_read_b64 {vr(KF[1]+4,2)}, v{KB}")
    a(f"s_mul_i32 s36, s34, {4*LT}")
    for i in range(4):
        a(f"v_add_u32 v{AD[0][i]}, s36, v{AD[0][i]}")
    AD0 = 136
    for i in range(4):
        a(f"v_mov_b32 v{AD0+i}, v{AD[0][i]}")
    for i in range(2):
        a(f"v_add_u32 v{AD[1][i]}, {LCH}, v{AD[0][i]}")
    rdK(0)
    dma(2)
    a(f"""
    s_mov_b32 exec_lo, 0
    v_mov_b32 v{Q[0]+4}, 0
    v_mov_b32 v{Q[0]+5}, 0
    v_mov_b32 v{Q[1]+4}, 0
    v_mov_b32 v{Q[1]+5}, 0
    s_mov_b64 exec, -1
    s_waitcnt lgkmcnt(2)
    """)
    qka(0, 1, 0); qkb(0, 1, 0)
    qka(1, 1, 1); qkb(1, 1, 1)
    rdK(1)
    a("s_nop 10")
    rowmax(SS[0], vT, vT2)
    rowmax(SS[1], P, P + 1)
    a(f"""
    s_mov_b32 exec_lo, 0
    v_cvt_pk_bf16_f32 v{Q[0]+4}, -v{vT}, 0
    v_cvt_pk_bf16_f32 v{Q[1]+4}, -v{P}, 0
    s_mov_b64 exec, -1
    v_mov_b32 v{P}, 0
    v_mov_b32 v{P+1}, 0
    """)
    for i in range(4):
        a(f"v_mov_b32 v{SS[1]+12+i}, 0")
    a("s_waitcnt lgkmcnt(0)")
    qka(0, 0, 0); qkb(0, 0, 0)
    a("s_nop 10")
    if 'm' in ABL: a.ts_mark(1)
    a(f"""
    s_mov_b32 s43, 1                      ; c+1
    s_mov_b32 s44, {LCH}
    s_mov_b32 s42, {3*LCH}
    v_mov_b32 v{vPV}, 1
    s_waitcnt vmcnt(3)
    ds_write_b32 v{vPW}, v{vPV}           ; A_1
    """)
    a.raw(".p2align 6")
    a.label("K2_LOOP")
    for u in range(8):
        cur, nxt = u % 2, 1 - u % 2
        tt = u
        s, sp = SS[cur], SS[nxt]
        ex = lambda i: a(f"v_exp_f32 v{s+i}, v{s+i}")
        cv = lambda i: a(f"v_cvt_pk_bf16_f32 v{P+i}, v{s+2*i}, v{s+2*i+1}")
        cvp = lambda i: a(f"v_cvt_pk_bf16_f32 v{P+i}, v{sp+2*i}, v{sp+2*i+1}")
        vprev = ((u - 1) // 2) % 2
        knext = ((u + 1) // 2) % 2
        pv(vprev, 0, nxt)
        if u % 2 == 0:
            rdV(u // 2)
        else:
            rdK((u - 1) // 2 + 2)
        if tt == 4:
            a(f"ds_read_b32 v{vT}, v{vPR}")
        bal = BAL and u % BAL == BAL - 1
        if bal:
            a(f"""
            s_mov_b64 exec, 1
            ds_add_rtn_u32 v{vPL}, v{vPC}, v{vPD}
            s_mov_b64 exec, -1
            """)
        ex(0); ex(1); cvp(6); ex(2); cvp(7); ex(3)
        qka(nxt, knext, nxt)
        if tt == 7:
            a(f"s_waitcnt vmcnt(3)")
            a(f"ds_write_b32 v{vPW}, v{vPV}")
            a(f"s_add_u32 s36, s44, {LCH}")
            a(f"s_cmp_eq_u32 s36, {4*LCH}")
            a(f"s_cselect_b32 s36, 0, s36")
        ex(4); ex(5); cv(0); ex(6); cv(1); ex(7)
        qkb(nxt, knext, nxt)
        if tt == 7:
            for i in range(4):
                a(f"v_add_u32 v{AD[0][i]}, s44, v{AD0+i}")
            for i in range(2):
                a(f"v_add_u32 v{AD[1][i]}, s36, v{AD0+i}")
            a("s_mov_b32 s44, s36")
        ex(8); ex(9); cv(2); ex(10); cv(3); ex(11)
        pv(vprev, 1, nxt)
        a("s_waitcnt lgkmcnt(0)")
        if tt == 6:
            a("s_add_u32 s43, s43, 1")
            a(f"v_add_u32 v{vPV}, 1, v{vPV}")
        if bal:
            a(f"""
            v_readfirstlane_b32 s36, v{vPL}
            s_setprio 0
            s_mul_i32 s36, s36, s45
            s_cmp_ge_i32 s36, 0
            s_cbranch_scc1 K2_BAL{u}
            s_setprio 1
            """)
            a.label(f"K2_BAL{u}")
        if tt == 7:
            a("s_cmp_le_u32 s43, 8")
        if tt == 4:
            a(f"v_cmp_gt_u32 vcc, s43, v{vT}")
            ex(12)
            a(f"s_cbranch_vccnz K2_SPIN")
            a.label(f"K2_SPUN")
            a(f"""
            s_add_u32 s36, s41, s42
            s_cmp_le_u32 s43, 5
            s_cselect_b32 m0, s36, {L_DUMMY}
            s_cselect_b32 s37, s40, {WS_END}
            s_mov_b64 exec, 0xffffffff
            buffer_load_dwordx4 v{vL16}, s[16:19], s37 offen offset:2048 lds
            s_mov_b64 exec, -1
            buffer_load_dwordx4 v{vL16}, s[16:19], s37 offen lds
            buffer_load_dwordx4 v{vL16}, s[16:19], s37 offen offset:1024 lds
            s_add_u32 s40, s40, {4 * KV_TILE}
            s_add_u32 s42, s42, {LCH}
            s_cmp_eq_u32 s42, {4*LCH}
            s_cselect_b32 s42, 0, s42
            """)
            ex(13); cv(4); ex(14); cv(5); ex(15)
        else:
            ex(12); ex(13); cv(4); ex(14); cv(5); ex(15)
    a("s_cbranch_scc1 K2_LOOP")
    sp = SS[1]
    pv(1, 0, 1)
    a(f"v_cvt_pk_bf16_f32 v{P+6}, v{sp+12}, v{sp+13}")
    a(f"v_cvt_pk_bf16_f32 v{P+7}, v{sp+14}, v{sp+15}")
    a(f"v_mov_b32 v{vPV}, 100")
    a(f"s_lshl_b32 s36, s3, 12")
    pv(1, 1, 1)
    a.ts_mark(2)
    a(f"""
    v_add_u32 v{vT2}, s36, v{vL16}
    s_xor_b32 s37, s3, 4
    s_lshl_b32 s37, s37, 2
    s_add_u32 s37, s37, {L_PROG}
    v_mov_b32 v{vPR}, s37
    s_nop 7
    """)
    for i in range(4):
        a(f"ds_write_b128 v{vT2}, {vr(O[1]+4*i,4)} offset:{1024*i}")
    a(f"""
    s_waitcnt lgkmcnt(0)
    ds_write_b32 v{vPW}, v{vPV}
    v_xor_b32 v{vT2}, 0x4000, v{vT2}
    """)
    a.label("K2_XW")
    a(f"""
    ds_read_b32 v{vT}, v{vPR}
    s_waitcnt lgkmcnt(0)
    v_cmp_gt_u32 vcc, 100, v{vT}
    s_nop 1
    s_cbranch_vccz K2_XOK
    s_sleep 1
    s_branch K2_XW
    """)
    a.label("K2_XOK")
    Oo = O[0]
    for i in range(4):
        a(f"ds_read_b128 {vr(O[1]+4*i,4)}, v{vT2} offset:{1024*i}")
    for i in range(4):
        a(f"s_waitcnt lgkmcnt({3-i})")
        for e in range(4):
            a(f"v_add_f32 v{Oo+4*i+e}, v{Oo+4*i+e}, v{O[1]+4*i+e}")
    a(f"v_mul_f32 v{vT}, 0, v{Oo}")
    for i in range(1, 12):
        a(f"v_fmac_f32 v{vT}, 0, v{Oo+i}")
    a(f"""
    v_add_f32 v{vT}, v{vT}, v{Oo+12}
    v_cmp_gt_f32 vcc, {f32(2.0**100)}, v{vT}
    s_nop 1
    s_cmp_eq_u64 vcc, exec
    s_cbranch_scc0 K2_SLOW
    """)
    a.label("K2_FIN")
    a(f"""
    v_rcp_f32 v{vT}, v{Oo+12}
    s_mul_i32 s36, s32, 5
    v_add_u32 v{vT2}, s36, v{vHH}
    s_lshl_b32 s36, s48, 10
    s_add_u32 s36, s36, {WS_O}
    """)
    for aa in range(3):
        o = Oo + 4 * aa
        for b in range(4):
            a(f"v_mul_f32 v{o+b}, v{vT}, v{o+b}")
        a(f"""
        v_cvt_pk_bf16_f32 v{P+2*aa}, v{o}, v{o+1}
        v_cvt_pk_bf16_f32 v{P+2*aa+1}, v{o+2}, v{o+3}
        v_add_u32 v{SS[0]}, {2*aa}, v{vT2}            ; k4
        v_lshrrev_b32 v{SS[0]+1}, 2, v{SS[0]}
        v_lshlrev_b32 v{SS[0]+1}, 16, v{SS[0]+1}      ; kstep*65536
        v_and_b32 v{SS[0]+2}, 1, v{SS[0]}
        v_lshl_add_u32 v{SS[0]+1}, v{SS[0]+2}, 9, v{SS[0]+1}
        v_bfe_u32 v{SS[0]+2}, v{SS[0]}, 1, 1
        v_lshl_add_u32 v{SS[0]+1}, v{SS[0]+2}, 3, v{SS[0]+1}
        v_lshl_add_u32 v{SS[0]+4+aa}, v{vM}, 4, v{SS[0]+1}
        """)
        if aa == 2:
            a("s_mov_b64 exec, 0xffffffff")
        a(f"buffer_store_dwordx2 {vr(P+2*aa,2)}, v{SS[0]+4+aa}, s[16:19], s36 offen")
    a("s_mov_b64 exec, -1")
    a.exit(1)
    a.label(f"K2_SPIN")
    a(f"""
    s_sleep 1
    ds_read_b32 v{vT}, v{vPR}
    s_waitcnt lgkmcnt(0)
    v_cmp_gt_u32 vcc, s43, v{vT}
    s_nop 1
    s_cbranch_vccnz K2_SPIN
    s_branch K2_SPUN
    """)
    a.label("K2_SLOW")
    vMX = SS[1]
    a(f"""
    s_mul_i32 s40, s32, {KV_HEAD}
    s_add_u32 s40, s40, {WS_KV}
    s_mov_b32 s43, 0
    v_mov_b32 v{vMX}, 0xff800000
    s_mov_b32 exec_lo, 0
    v_mov_b32 v{Q[0]+4}, 0
    s_mov_b64 exec, -1
    """)
    for i in range(16):
        a(f"v_mov_b32 v{Oo+i}, 0")
    a.label("K2_SLOOP")
    s = SS[0]
    a(f"""
    buffer_load_dwordx4 {vr(KF[0],4)}, v{vL16}, s[16:19], s40 offen
    buffer_load_dwordx2 {vr(KF[0]+4,2)}, v{vKB0}, s[16:19], s40 offen
    s_mov_b64 exec, s[46:47]
    buffer_load_dwordx4 {vr(VF[0],4)}, v{vVG}, s[16:19], s40 offen
    buffer_load_dwordx4 {vr(VF[0]+4,4)}, v{vVG}, s[16:19], s40 offen offset:640
    s_mov_b64 exec, -1
    s_waitcnt vmcnt(0)
    """)
    qka(0, 0, 0)
    qkb(0, 0, 0)
    a("s_nop 15")
    rowmax(s, vT, vT2, vMX)
    a(f"""
    v_sub_f32 v{vT2}, v{vMX}, v{vT}
    v_exp_f32 v{vT2}, v{vT2}                ; alpha
    v_mov_b32 v{vMX}, v{vT}
    """)
    for i in range(16):
        a(f"v_sub_f32 v{s+i}, v{s+i}, v{vT}")
    for i in range(16):
        a(f"v_exp_f32 v{s+i}, v{s+i}")
    for i in range(16):
        a(f"v_mul_f32 v{Oo+i}, v{vT2}, v{Oo+i}")
    for i in range(8):
        a(f"v_cvt_pk_bf16_f32 v{P+i}, v{s+2*i}, v{s+2*i+1}")
    a("s_nop 1")
    pv(0, 0, 0)
    pv(0, 1, 0)
    a(f"""
    s_add_u32 s40, s40, {KV_TILE}
    s_add_u32 s43, s43, 1
    s_nop 15
    s_cmp_lt_u32 s43, 64
    s_cbranch_scc1 K2_SLOOP
    s_branch K2_FIN
    """)

def gen_k2():
    from ffn import gen_ffn
    a = Asm()
    a.raw(".p2align 8")
    a.raw(".type k2_kernel,@function")
    a.label("k2_kernel")
    a(f"""
    s_cmp_ge_u32 s2, 256
    s_cbranch_scc1 K2_END
    """)
    a.ts_start()
    a(f"""
    s_load_dwordx2 s[30:31], s[0:1], 80
    v_lshrrev_b32 v1, 6, v0
    s_and_b32 s34, s2, 7                 ; xcd
    v_readfirstlane_b32 s3, v1           ; wave
    v_and_b32 v1, 63, v0                 ; lane
    s_lshr_b32 s35, s2, 3                ; idx
    s_lshl_b32 s32, s34, 2
    s_lshr_b32 s36, s35, 3
    s_add_u32 s32, s32, s36
    s_and_b32 s33, s35, 7
    s_cmp_ge_u32 s3, 8
    s_cbranch_scc1 K2_FFN
    s_waitcnt lgkmcnt(0)
    """)
    srd(a, 16, 30, WS_END)
    if 'A' in ABL:
        a("s_barrier")
        a("s_endpgm")
    if os.environ.get('APRIO'): a(f"s_setprio {os.environ.get('APRIO')}")
    gen_attn(a)
    a.label("K2_FFN")
    a(f"""
    s_load_dwordx2 s[4:5], s[0:1], 40
    s_load_dwordx2 s[6:7], s[0:1], 56
    s_load_dwordx2 s[8:9], s[0:1], 72
    s_sub_u32 s50, s3, 8
    s_mov_b32 s51, s32
    s_mov_b32 s52, s33
    s_setprio {os.environ.get('FPRIO', '2')}
    s_waitcnt lgkmcnt(0)
    """)
    srd(a, 16, 30, WS_END)
    srd(a, 56, 4, F * 2)
    srd(a, 60, 6, D * 2)
    srd(a, 64, 8, 256)
    if 'F' in ABL:
        a("s_barrier")
        a("s_endpgm")
    lds = gen_ffn(a, L_ATT_END, 1)
    a.label("K2_END")
    a("s_endpgm")
    return a.text(), kernel_desc("k2_kernel", 168), f"; @launch kernel=k2_kernel grid=(256,1,1) block=(768,1,1) lds={lds}"
```

```python
import sys
from k1 import gen_k1
from k2 import gen_k2
from k3 import gen_k3
def build(parts, path):
    hdr = open("parallel_sum__mha_block__dense_activation_gelu__prompt.s.ref").read().split("; Override launch")[0]
    s = hdr
    for p in parts:
        s += p[2] + "\n"
    s += '.amdgcn_target "amdgcn-amd-amdhsa--gfx950"\n.text\n'
    seen = set()
    for p in parts:
        if p[1] in seen: continue
        s += p[0]
        seen.add(p[1])
    s += '.section .rodata,"a"\n'
    seen = set()
    for p in parts:
        if p[1] in seen: continue
        seen.add(p[1])
        s += ".p2align 6\n" + p[1]
    import os
    fa = os.environ.get("FABL", "")
    if fa:
        i, j = s.index("K2_FFN:"), s.index("K2_END:")
        body = s[i:j].split("\n")
        out = []
        for l in body:
            if 'm' in fa and "v_mfma" in l: continue
            if 'l' in fa and "buffer_load_dwordx4" in l: continue
            if 'v' in fa and any(x in l for x in ("v_exp_f32", "v_rcp_f32", "v_mul_f32", "v_fma_f32", "v_add_f32")): continue
            out.append(l)
        s = s[:i] + "\n".join(out) + s[j:]
    lp = os.environ.get("LPRIO")
    if lp:
        fp = os.environ.get("FPRIO", "2")
        i, j = s.index("K2_FFN:"), s.index("K2_END:")
        body = s[i:j].split("\n")
        out = []
        inl = False
        for l in body:
            isl = "buffer_load_dwordx4" in l
            if isl and not inl:
                out.append(f"    s_setprio {lp}"); inl = True
            elif inl and not isl:
                out.append(f"    s_setprio {fp}"); inl = False
            out.append(l)
        s = s[:i] + "\n".join(out) + s[j:]
    open(path, "w").write(s)
if __name__ == "__main__":
    import asmlib
    if "--ts" in sys.argv:
        asmlib.Asm.TS = True
        sys.argv.remove("--ts")
    out = sys.argv[1] if len(sys.argv) > 1 else "out.s"
    build([gen_k1(), gen_k2(), gen_k3()], out)
```

```python
class Asm:
    def __init__(self):
        self.L = []
        self.vm_issued = 0
        self.lg_issued = 0
    def __call__(self, s):
        for line in s.strip("\n").split("\n"):
            line = line.strip()
            if line:
                self.L.append("    " + line)
    def label(self, l):
        self.L.append(l + ":")
    def raw(self, s):
        self.L.append(s)
    def c(self, s):
        self.L.append("    ; " + s)
    def vm(self, s):
        self(s)
        self.vm_issued += 1
        return self.vm_issued
    def wait_vm(self, tok):
        n = self.vm_issued - tok
        assert n >= 0
        self(f"s_waitcnt vmcnt({min(n, 63)})")
    def lg(self, s):
        self(s)
        self.lg_issued += 1
        return self.lg_issued
    def wait_lg(self, tok):
        n = self.lg_issued - tok
        assert n >= 0
        self(f"s_waitcnt lgkmcnt({min(n, 15)})")
    TS = False
    def ts_start(self):
        if Asm.TS:
            for i in range(1, 7): self(f"s_mov_b32 s{88+i}, 0")
            self.ts_mark(0)
    def ts_mark(self, i):
        if Asm.TS:
            self("s_memrealtime s[98:99]")
            self("s_waitcnt lgkmcnt(0)")
            self(f"s_mov_b32 s{88+i}, s98")
    def exit(self, kidx=0, swave="s3", srd="s[16:19]"):
        if Asm.TS:
            from layout import WS_TS
            self(f"""
            s_waitcnt vmcnt(0) lgkmcnt(0)
            s_memrealtime s[98:99]
            s_lshl_b32 s100, s2, 4
            s_add_u32 s100, s100, {swave}
            s_lshl_b32 s100, s100, 5
            s_add_u32 s100, s100, {WS_TS + kidx * 131072}
            s_waitcnt lgkmcnt(0)
            s_mov_b64 exec, 1
            v_mov_b32 v0, s88
            v_mov_b32 v1, s98
            v_mov_b32 v2, s89
            v_mov_b32 v3, s90
            v_mov_b32 v4, s91
            v_mov_b32 v5, s92
            v_mov_b32 v6, s93
            v_mov_b32 v7, s94
            v_mov_b32 v8, 0
            buffer_store_dwordx4 v[0:3], v8, {srd}, s100 offen
            buffer_store_dwordx4 v[4:7], v8, {srd}, s100 offen offset:16
            """)
        self("s_endpgm")
    def text(self):
        return "\n".join(self.L) + "\n"

def vr(b, n=1):
    return f"v{b}" if n == 1 else f"v[{b}:{b+n-1}]"
def sr(b, n=1):
    return f"s{b}" if n == 1 else f"s[{b}:{b+n-1}]"

def kernel_desc(name, nvgpr, nsgpr=102):
    acc = (nvgpr + 3) // 4 * 4
    return f""".amdhsa_kernel {name}
  .amdhsa_next_free_vgpr {nvgpr}
  .amdhsa_next_free_sgpr {nsgpr}
  .amdhsa_accum_offset {acc}
  .amdhsa_group_segment_fixed_size 0
  .amdhsa_kernarg_size 88
  .amdhsa_user_sgpr_count 2
  .amdhsa_user_sgpr_kernarg_segment_ptr 1
  .amdhsa_system_sgpr_workgroup_id_x 1
.end_amdhsa_kernel
"""
import struct
def f32(x):
    return "0x%08x" % struct.unpack("<I", struct.pack("<f", x))[0]
```

```python
from asmlib import *
from layout import *

class G:
    def __init__(s, base_v, acc, sets, nsets, lds_red, lds_prog, tag):
        s.vA0, s.vA1, s.vB, s.vL16, s.vPW, s.vPR, s.vPV, s.vT, s.vRW, s.vRR = range(base_v, base_v + 10)
        s.acc = acc; s.sets = sets; s.nsets = nsets
        s.red = lds_red; s.prog = lds_prog; s.tag = tag
        s.phase = 0; s.nspin = 0

def setup(a, g, sj):
    a(f"""
    v_lshlrev_b32 v{g.vL16}, 4, v1
    s_lshr_b32 s36, s{sj}, 1
    s_lshl_b32 s36, s36, 10
    v_add_u32 v{g.vA0}, s36, v{g.vL16}
    v_xor_b32 v{g.vA1}, 0x400, v{g.vA0}         ; m-slot 1
    s_and_b32 s36, s{sj}, 1
    s_lshl_b32 s36, s36, 8
    v_xor_b32 v{g.vB}, s36, v{g.vL16}           ; lane ^ 16*(j&1)
    s_lshl_b32 s36, s{sj}, 2
    s_add_u32 s36, s36, {g.prog}
    v_mov_b32 v{g.vPW}, s36
    v_and_b32 v{g.vPR}, 3, v1
    v_lshlrev_b32 v{g.vPR}, 2, v{g.vPR}
    v_add_u32 v{g.vPR}, {g.prog}, v{g.vPR}
    v_mov_b32 v{g.vPV}, 0
    s_mul_i32 s36, s{sj}, 18432
    s_add_u32 s36, s36, {g.red}
    v_add_u32 v{g.vRR}, s36, v{g.vL16}
    """)

def sync(a, g, use_barrier=False):
    if use_barrier:
        a("s_waitcnt lgkmcnt(0)")
        a("s_barrier")
        return
    arrive(a, g); wait(a, g)

def arrive(a, g):
    g.phase += 1
    a(f"""
    v_mov_b32 v{g.vPV}, {g.phase}
    s_waitcnt lgkmcnt(0)
    ds_write_b32 v{g.vPW}, v{g.vPV}
    """)

def wait(a, g):
    g.nspin += 1
    L = f"{g.tag}_SP{g.nspin}"
    a.label(L)
    a(f"""
    ds_read_b32 v{g.vT}, v{g.vPR}
    s_waitcnt lgkmcnt(0)
    v_cmp_gt_u32 vcc, {g.phase}, v{g.vT}
    s_nop 1
    s_cbranch_vccz {L}_OK
    s_add_u32 s101, s101, 1
    s_cmp_gt_u32 s101, 0x40000
    s_cbranch_scc1 K_END
    s_sleep 2
    s_branch {L}
    """)
    a.label(L + "_OK")

class KLoop:
    def __init__(s, a, g, NB, nk, sA, sB, strideA, strideB, aflag="", accpfx="v", setsz=None, bflag="", planes=False, accumulate=False):
        s.bflag, s.planes, s.accum = bflag, planes, accumulate
        s.a, s.g, s.NB, s.nk, s.sA, s.sB, s.strideA, s.strideB, s.aflag, s.accpfx = a, g, NB, nk, sA, sB, strideA, strideB, aflag, accpfx
        s.toks = {}
        s.setsz = setsz or 20
        s.D = g.nsets - 1
    def loads(s, k):
        a, g, NB = s.a, s.g, s.NB
        b = g.sets + s.setsz * (k % g.nsets)
        def lda(r, va):
            if not s.planes:
                return a.vm(f"buffer_load_dwordx4 {vr(r,4)}, v{va}, s[16:19], s{s.sA} offen {s.aflag}")
            a.vm(f"buffer_load_dwordx2 {vr(r,2)}, v{va}, s[16:19], s{s.sA} offen {s.aflag}")
            return a.vm(f"buffer_load_dwordx2 {vr(r+2,2)}, v{va}, s[16:19], s{s.sA} offen offset:512 {s.aflag}")
        lda(b, g.vA0)
        for nb in range(NB):
            t = a.vm(f"buffer_load_dwordx4 {vr(b+8+4*nb,4)}, v{g.vB}, s[16:19], s{s.sB} offen offset:{1024*nb} {s.bflag}")
        s.toks[(k, 1)] = t
        s.toks[(k, 2)] = lda(b + 4, g.vA1)
        if k + 1 < s.nk:
            a(f"s_add_u32 s{s.sA}, s{s.sA}, {s.strideA}")
            a(f"s_add_u32 s{s.sB}, s{s.sB}, {s.strideB}")
    def prefetch(s):
        for k in range(min(s.D, s.nk)):
            s.loads(k)
    def run(s):
        a, g, NB = s.a, s.g, s.NB
        def R(b, n): return f"{s.accpfx}[{b}:{b+n-1}]"
        for k in range(s.nk):
            b = g.sets + s.setsz * (k % g.nsets)
            a.wait_vm(s.toks[(k, 1)])
            for nb in range(NB):
                d = g.acc + 16 * (2 * nb)
                a(f"v_mfma_f32_32x32x16_bf16 {R(d,16)}, {vr(b+8+4*nb,4)}, {vr(b,4)}, {R(d,16) if (k or s.accum) else '0'}")
                if nb == 0 and k + s.D < s.nk:
                    s.loads(k + s.D)
            a.wait_vm(s.toks[(k, 2)])
            for nb in range(NB):
                d = g.acc + 16 * (2 * nb + 1)
                a(f"v_mfma_f32_32x32x16_bf16 {R(d,16)}, {vr(b+8+4*nb,4)}, {vr(b+4,4)}, {R(d,16) if (k or s.accum) else '0'}")

def reduce(a, g, NB, sj, use_barrier=False, accpfx="v"):
    def R(b, n): return f"{accpfx}[{b}:{b+n-1}]"
    if g.phase % 2 == 0 and g.phase > 0 and not use_barrier:
        wait(a, g)
    a("s_nop 7")
    for x in (1, 2, 3):
        a(f"""
        s_xor_b32 s36, s{sj}, {x}
        s_mul_i32 s36, s36, 18432
        s_add_u32 s36, s36, {g.red + (x-1)*6144}
        v_add_u32 v{g.vRW}, s36, v{g.vL16}
        """)
        for nb in range(NB):
            r = g.acc + 32 * nb + 16 * (x >> 1) + 8 * (x & 1)
            a(f"ds_write_b128 v{g.vRW}, {R(r,4)} offset:{2048*nb}")
            a(f"ds_write_b128 v{g.vRW}, {R(r+4,4)} offset:{2048*nb+1024}")
    sync(a, g, use_barrier)
    for nb in range(NB):
        for x in (1, 2, 3):
            r = g.acc + 32 * nb + 16 * (x >> 1) + 8 * (x & 1)
            a(f"ds_read_b128 {vr(r,4)}, v{g.vRR} offset:{(x-1)*6144+2048*nb}")
            a(f"ds_read_b128 {vr(r+4,4)}, v{g.vRR} offset:{(x-1)*6144+2048*nb+1024}")
        if nb >= 1:
            addup(a, g, nb - 1, 6)
    addup(a, g, NB - 1, 0)
    if not use_barrier:
        arrive(a, g)

def addup(a, g, nb, cnt):
    a(f"s_waitcnt lgkmcnt({cnt})")
    o = g.acc + 32 * nb
    for i in range(8):
        a(f"v_add_f32 v{o+8+i}, v{o+8+i}, v{o+16+i}")
        a(f"v_add_f32 v{o+i}, v{o+i}, v{o+24+i}")
    for i in range(8):
        a(f"v_add_f32 v{o+i}, v{o+i}, v{o+8+i}")

def bias_load(a, vdst, vboff, srd, soff, nb):
    a.vm(f"buffer_load_dwordx2 {vr(vdst,2)}, v{vboff}, {srd}, s{soff} offen offset:{64*nb}")
    return a.vm(f"buffer_load_dwordx2 {vr(vdst+2,2)}, v{vboff}, {srd}, s{soff} offen offset:{64*nb+16}")

def add_bias(a, o, vb, t):
    for i in range(4):
        a(f"v_lshlrev_b32 v{t}, 16, v{vb+i}")
        a(f"v_and_b32 v{t+1}, 0xffff0000, v{vb+i}")
        a(f"v_add_f32 v{o+2*i}, v{o+2*i}, v{t}")
        a(f"v_add_f32 v{o+2*i+1}, v{o+2*i+1}, v{t+1}")

C1 = -2.0 * 0.7978845608028654 * 1.4426950408889634
C2 = C1 * 0.044715
def gelu(a, o, t, sC2, vC1):
    for i in range(8): a(f"v_mul_f32 v{t+i}, v{o+i}, v{o+i}")
    for i in range(8): a(f"v_fma_f32 v{t+i}, v{t+i}, s{sC2}, v{vC1}")
    for i in range(8): a(f"v_mul_f32 v{t+i}, v{t+i}, v{o+i}")
    for i in range(8): a(f"v_exp_f32 v{t+i}, v{t+i}")
    for i in range(8): a(f"v_add_f32 v{t+i}, 1.0, v{t+i}")
    for i in range(8): a(f"v_rcp_f32 v{t+i}, v{t+i}")
    for i in range(8): a(f"v_mul_f32 v{o+i}, v{o+i}, v{t+i}")

def pack8(a, o, d):
    for i in range(4):
        a(f"v_cvt_pk_bf16_f32 v{d+i}, v{o+2*i}, v{o+2*i+1}")
```

```python
S, D, H, DH, F = 2048, 640, 32, 20, 1728
QBLK = 160 * 256
WS_Q   = 0
WS_KV  = WS_Q + 64 * QBLK
KV_TILE = 2560
KV_HEAD = 64 * KV_TILE
WS_W2F = WS_KV + H * KV_HEAD
WS_WOF = WS_W2F + 108 * 20 * 1024
WS_H   = WS_WOF + 40 * 20 * 1024 + 4096
WS_O   = WS_H + 112 * 64 * 1024
WS_STAT = WS_O + 64 * QBLK
WS_CNT = WS_STAT + 32768
CN_Q, CN_H, CN_P, CN_O = WS_CNT, WS_CNT + 4096, WS_CNT + 8192, WS_CNT + 12288
WS_TS = WS_CNT + 32768
WS_END = WS_TS + 8 * 131072
QSCALE = (DH ** -0.5) * 1.4426950408889634
DB_ST = 32
```

```python
from asmlib import *
from layout import *
import gemm
from gemm import G
import os
ABL = os.environ.get('ABL', '')
NAME = "parallel_sum__mha_block__dense_activation_gelu__prompt_kernel"

SLOT = 32768
L_MEAN = 131072
L_RINV = L_MEAN + 512
L_MR = L_MEAN + 1024
L_CS = L_MEAN + 1536
LT = KV_TILE + 16
LCH = 8 * LT
L_DUMMY = 4 * LCH
L_RED = 85248
L_SYNC = L_RED + 4 * 18432
L_APROG, L_PAIR, L_FPROG = L_SYNC, L_SYNC + 32, L_SYNC + 64
L_CNTQ, L_CNTH, L_CNTO, L_CNTP, L_REL = L_SYNC + 80, L_SYNC + 84, L_SYNC + 88, L_SYNC + 92, L_SYNC + 96
L_CNTF, L_RELA = L_SYNC + 100, L_SYNC + 104
LDS_TOTAL = L_SYNC + 256
NPIECE = 740
VMASK = "0x000fffff"
DBG = "s[76:79]"

def srd(a, d, base, nbytes):
    a(f"s_mov_b32 s{d}, s{base}")
    a(f"s_mov_b32 s{d+1}, s{base+1}")
    a(f"s_mov_b32 s{d+2}, {nbytes}")
    a(f"s_mov_b32 s{d+3}, 0x00020000")

def tr_pattern(a, vD, vlane, vtmp, hh_mul):
    a(f"""
    v_lshrrev_b32 v{vtmp}, 5, v{vlane}
    v_mul_u32_u24 v{vD}, {hh_mul}, v{vtmp}
    v_bfe_u32 v{vtmp}, v{vlane}, 2, 2
    v_lshl_add_u32 v{vD}, v{vtmp}, 6, v{vD}
    v_bfe_u32 v{vtmp}, v{vlane}, 4, 1
    v_lshl_add_u32 v{vD}, v{vtmp}, 5, v{vD}
    v_and_b32 v{vtmp}, 3, v{vlane}
    v_lshl_add_u32 v{vD}, v{vtmp}, 3, v{vD}
    """)

def bf16r(a, v):
    a(f"v_cvt_pk_bf16_f32 v{v}, v{v}, v{v}")
    a(f"v_and_b32 v{v}, 0xffff0000, v{v}")

_uid = [0]
def uid(p):
    _uid[0] += 1
    return f"{p}{_uid[0]}"

def publish(a, lcnt, nwaves, sword, t):
    L = uid("PUB")
    a(f"""
    v_mov_b32 v{t}, {lcnt}
    v_mov_b32 v{t+1}, 1
    v_mov_b32 v{t+3}, s{sword}
    s_waitcnt vmcnt(0)
    s_mov_b64 exec, 1
    ds_add_rtn_u32 v{t+2}, v{t}, v{t+1}
    s_waitcnt lgkmcnt(0)
    v_readfirstlane_b32 s36, v{t+2}
    s_cmp_lg_u32 s36, {nwaves-1}
    s_cbranch_scc1 {L}
    buffer_atomic_add v{t+1}, v{t+3}, s[16:19], 0 offen sc1
    """)
    a.label(L)
    a("s_mov_b64 exec, -1")

def poll(a, vaddr, vexp, t, sleep=4, srd="s[16:19]"):
    L = uid("POLL")
    a.label(L)
    a(f"""
    buffer_load_dword v{t}, v{vaddr}, {srd}, 0 offen sc1
    s_waitcnt vmcnt(0)
    v_cmp_gt_u32 vcc, v{vexp}, v{t}
    s_nop 1
    s_cbranch_vccz {L}_OK
    s_add_u32 s101, s101, 1
    s_cmp_gt_u32 s101, 0x40000
    s_cbranch_scc1 K_END
    s_sleep {sleep}
    s_branch {L}
    """)
    a.label(L + "_OK")

def lds_add(a, addr, t):
    a(f"""
    v_mov_b32 v{t}, {addr}
    v_mov_b32 v{t+1}, 1
    s_mov_b64 exec, 1
    ds_add_u32 v{t}, v{t+1}
    s_mov_b64 exec, -1
    """)

def lds_wait(a, addr, target, t, sleep=1):
    L = uid("LW")
    a(f"v_mov_b32 v{t}, {addr}")
    a.label(L)
    a(f"""
    ds_read_b32 v{t+1}, v{t}
    s_waitcnt lgkmcnt(0)
    v_cmp_gt_u32 vcc, {target}, v{t+1}
    s_nop 1
    s_cbranch_vccz {L}_OK
    s_add_u32 s101, s101, 1
    s_cmp_gt_u32 s101, 0x40000
    s_cbranch_scc1 K_END
    s_sleep {sleep}
    s_branch {L}
    """)
    a.label(L + "_OK")

def lds_sync(a, addr, target, t):
    lds_add(a, addr, t)
    lds_wait(a, addr, target, t)

def init_seen(a, t):
    a(f"""
    v_and_b32 v{t}, 15, v1
    v_lshlrev_b32 v{t}, 2, v{t}
    v_mov_b32 v{t+1}, 1
    """)
    poll(a, t, t + 1, t + 2, 16, DBG)

def shard_regs(a, va, ve, base, expect):
    a(f"""
    v_and_b32 v{va}, 15, v1
    v_lshlrev_b32 v{va}, 8, v{va}
    v_add_u32 v{va}, {base}, v{va}
    v_mov_b32 v{ve}, {expect}
    """)

def gen_prep(a):
    vG, vT, vL16, vPL, vTR, vD, vO = 2, 3, 4, 5, 6, 8, 40
    a(f"""
    s_sub_u32 s47, s33, 14
    s_lshl_b32 s47, s47, 4
    s_add_u32 s47, s47, s32
    s_mul_i32 s47, s47, 12
    s_add_u32 s47, s47, s3
    v_lshlrev_b32 v{vL16}, 4, v1
    v_bfe_u32 v{vT}, v1, 2, 2
    v_mul_u32_u24 v{vG}, 1280, v{vT}
    v_and_b32 v{vT}, 3, v1
    v_lshl_add_u32 v{vG}, v{vT}, 4, v{vG}
    v_lshrrev_b32 v{vT}, 4, v1
    v_lshl_add_u32 v{vG}, v{vT}, 6, v{vG}
    """)
    tr_pattern(a, vTR, 1, vT, 1024)
    a(f"""
    s_lshl_b32 s36, s3, 13
    v_add_u32 v{vTR}, s36, v{vTR}
    v_add_u32 v{vPL}, s36, v{vL16}
    """)
    for r in range(2):
        a(f"""
        s_add_u32 s40, s47, {384*r}
        s_min_u32 s40, s40, {NPIECE-1}
        s_cmp_lt_u32 s40, 540
        s_cselect_b32 s36, 0, 540
        s_cselect_b32 s20, s28, s24
        s_cselect_b32 s21, s29, s25
        s_mov_b32 s22, {640*640*2}
        s_cselect_b32 s22, {1728*640*2}, s22
        s_mov_b32 s23, 0x00020000
        s_sub_u32 s36, s40, s36
        s_mul_i32 s37, s36, {(1<<20)//5+1}
        s_lshr_b32 s37, s37, 20              ; kstep
        s_mul_i32 s38, s37, 5
        s_sub_u32 s36, s36, s38              ; cb
        s_mul_i32 s37, s37, {16*1280}
        s_lshl_b32 s36, s36, 8
        s_add_u32 s37, s37, s36
        s_lshl_b32 s{42+r}, s40, 12
        s_add_u32 s{42+r}, s{42+r}, {WS_W2F}
        """)
        for j in range(4):
            a(f"buffer_load_dwordx4 {vr(vD+16*r+4*j,4)}, v{vG}, s[20:23], s37 offen")
            a(f"s_add_u32 s37, s37, {4*1280}")
    for r in range(2):
        a(f"s_waitcnt vmcnt({4 if r == 0 else 4})")
        for j in range(4):
            a(f"ds_write_b128 v{vPL}, {vr(vD+16*r+4*j,4)} offset:{4096*r+j*1024}")
        a("s_waitcnt lgkmcnt(0)")
        for nb in range(4):
            for q in range(2):
                a(f"ds_read_b64_tr_b16 {vr(vO+16*r+4*nb+2*q,2)}, v{vTR} offset:{4096*r+q*2048+nb*256}")
        for nb in range(4):
            a(f"s_waitcnt lgkmcnt({6-2*nb})")
            a(f"buffer_store_dwordx4 {vr(vO+16*r+4*nb,4)}, v{vL16}, s[16:19], s{42+r} offen offset:{nb*1024} sc1")
    a(f"s_lshl_b32 s37, s32, 8")
    a(f"s_add_u32 s37, s37, {CN_P}")
    publish(a, L_CNTP, 12, 37, 72)

def gen_stats(a):
    XR = 16
    a(f"""
    s_cmp_ge_u32 s3, 8
    s_cbranch_scc1 ST_ZERO
    v_lshrrev_b32 v2, 3, v1
    v_and_b32 v3, 7, v1
    v_mul_u32_u24 v4, 1280, v2
    v_lshl_add_u32 v4, v3, 4, v4
    s_lshl_b32 s36, s32, 3
    s_add_u32 s36, s36, s3
    s_mul_i32 s36, s36, {16*1280}
    s_add_u32 s37, s36, {8*1280}
    """)
    a.vm_issued = 0
    tk = {}
    for g in range(2):
        for i in range(10):
            tk[(g, i)] = a.vm(f"buffer_load_dwordx4 {vr(XR+40*g+4*i,4)}, v4, s[8:11], s{36+g} offen offset:{128*i}")
    vS, vQ = 8, 10
    for i in range(4):
        a(f"v_mov_b32 v{vS+i}, 0")
    a("s_mov_b32 s38, 0x3f803f80")
    for g in range(2):
        for i in range(10):
            a.wait_vm(tk[(g, i)])
            for e in range(4):
                r = XR + 40 * g + 4 * i + e
                a(f"v_dot2c_f32_bf16 v{vS+g}, s38, v{r}")
                a(f"v_dot2c_f32_bf16 v{vQ+g}, v{r}, v{r}")
    a("s_nop 3")
    dpp = "row_mask:0xf bank_mask:0xf"
    for pat in ("quad_perm:[1,0,3,2]", "quad_perm:[2,3,0,1]", "row_half_mirror"):
        for i in range(4):
            a(f"v_add_f32_dpp v{vS+i}, v{vS+i}, v{vS+i} {pat} {dpp}")
    a(f"s_mov_b32 s36, {f32(1.0/640)}")
    for j in range(2):
        a(f"v_mul_f32 v{vS+j}, s36, v{vS+j}")
        a(f"v_mul_f32 v{vQ+j}, s36, v{vQ+j}")
    for j in range(2):
        a(f"v_fma_f32 v{vQ+j}, -v{vS+j}, v{vS+j}, v{vQ+j}")
    for j in range(2):
        a(f"v_max_f32 v{vQ+j}, 0, v{vQ+j}")
    for j in range(2):
        bf16r(a, vS + j); bf16r(a, vQ + j)
    for j in range(2):
        a(f"v_add_f32 v{vQ+j}, {f32(1e-5)}, v{vQ+j}")
    for j in range(2):
        bf16r(a, vQ + j)
    for j in range(2):
        a(f"v_sqrt_f32 v{vQ+j}, v{vQ+j}")
    a("s_nop 0")
    for j in range(2):
        bf16r(a, vQ + j)
    for j in range(2):
        a(f"v_rcp_f32 v{vQ+j}, v{vQ+j}")
    a(f"""
    s_mul_i32 s36, s32, 1536
    s_lshl_b32 s37, s3, 6
    s_add_u32 s36, s36, s37
    s_add_u32 s36, s36, {WS_STAT}
    v_lshlrev_b32 v2, 2, v2
    v_cmp_eq_u32 vcc, 0, v3
    """)
    for j in range(2):
        a(f"v_mul_f32 v{12+j}, v{vS+j}, v{vQ+j}")
    a("s_and_saveexec_b64 s[40:41], vcc")
    for j in range(2):
        a(f"buffer_store_dword v{vS+j}, v2, s[16:19], s36 offen offset:{32*j} sc1")
        a(f"buffer_store_dword v{vQ+j}, v2, s[16:19], s36 offen offset:{512+32*j} sc1")
        a(f"buffer_store_dword v{12+j}, v2, s[16:19], s36 offen offset:{1024+32*j} sc1")
    a(f"""
    s_mov_b64 exec, s[40:41]
    s_branch ST_BAR
    """)
    a.label("ST_ZERO")
    a(f"""
    s_sub_u32 s36, s3, 8
    s_lshl_b32 s36, s36, 12
    s_lshl_b32 s37, s32, 8
    s_add_u32 s36, s36, s37
    s_add_u32 s36, s36, {WS_CNT}
    v_mov_b32 v2, 0
    s_mov_b64 exec, 1
    buffer_store_dword v2, v2, s[16:19], s36 offen sc1
    s_mov_b64 exec, -1
    """)
    a.label("ST_BAR")
    a("s_waitcnt vmcnt(0)")
    a(f"""
    s_waitcnt lgkmcnt(0)
    s_barrier
    s_cmp_lg_u32 s3, 0
    s_cbranch_scc1 ST_DONE
    s_lshl_b32 s36, s32, 2
    v_mov_b32 v2, s36
    v_mov_b32 v3, 1
    s_mov_b64 exec, 1
    buffer_store_dword v3, v2, {DBG}, 0 offen offset:{DB_ST*4} sc1
    s_mov_b64 exec, -1
    """)
    init_seen(a, 2)
    a.label("ST_DONE")
    a.ts_mark(1)

from mega_attn import Attn
from mega_ffn import gen_ffn2

def gen_mega():
    a = Asm()
    a.raw(".p2align 8")
    a.raw(f".type {NAME},@function")
    a.label(NAME)
    a(f"""
    s_cmp_ge_u32 s2, 256
    s_cbranch_scc1 K_END
    """)
    a.ts_start()
    a(f"""
    s_load_dwordx4 s[4:7], s[0:1], 0       ; x, wqkv
    s_load_dwordx4 s[68:71], s[0:1], 72
    s_load_dwordx2 s[24:25], s[0:1], 16    ; wo
    s_load_dwordx4 s[52:55], s[0:1], 32    ; w1, b1
    s_load_dwordx4 s[28:31], s[0:1], 48    ; w2, b2
    s_load_dwordx2 s[72:73], s[0:1], 64    ; out
    s_mov_b32 s101, 0
    v_lshrrev_b32 v1, 6, v0
    s_and_b32 s34, s2, 7                 ; xcd
    v_readfirstlane_b32 s3, v1           ; wave
    v_and_b32 v1, 63, v0                 ; lane
    s_lshr_b32 s35, s2, 3                ; idx
    s_and_b32 s32, s34, 3
    s_lshl_b32 s32, s32, 2
    s_and_b32 s36, s35, 3
    s_add_u32 s32, s32, s36              ; mt
    s_lshr_b32 s33, s35, 2
    s_lshr_b32 s36, s34, 2
    s_sub_u32 s33, s33, s36
    s_and_b32 s33, s33, 7
    s_lshl_b32 s36, s36, 3
    s_add_u32 s33, s33, s36
    s_lshl_b32 s80, s34, 2
    s_lshr_b32 s36, s35, 3
    s_add_u32 s80, s80, s36
    s_and_b32 s81, s35, 7
    s_lshl_b32 s82, s32, 8
    s_add_u32 s82, s82, {CN_Q}
    v_lshlrev_b32 v2, 2, v1
    v_add_u32 v2, {L_SYNC}, v2
    v_mov_b32 v3, 0
    s_cmp_lg_u32 s3, 0
    s_cbranch_scc1 K_NOZ
    ds_write_b32 v2, v3
    """)
    a.label("K_NOZ")
    a("s_waitcnt lgkmcnt(0)")
    srd(a, 8, 4, S * D * 2)
    srd(a, 12, 6, D * 3 * D * 2)
    srd(a, 16, 70, WS_END)
    srd(a, 76, 68, 256)
    a(f"""
    s_cmp_eq_u32 s33, 15
    s_cbranch_scc1 K_STATS
    s_cmp_lt_u32 s3, 4
    s_cbranch_scc1 K_MFMA
    """)
    at = Attn(a)
    vXG = [140, 141]; vWG = 142
    vT, vT2, vT3 = 143, 144, 145
    a(f"""
    s_sub_u32 s34, s3, 4                  ; hw 0..7
    v_lshrrev_b32 v{vT}, 3, v1
    v_and_b32 v{vT2}, 7, v1
    v_lshrrev_b32 v{vT3}, 4, v1
    v_xor_b32 v{vT2}, v{vT2}, v{vT3}
    v_mul_u32_u24 v{vXG[0]}, 1280, v{vT}
    s_lshl_b32 s36, s32, 3
    s_add_u32 s36, s36, s34
    s_mul_i32 s36, s36, {16*1280}
    v_add_u32 v{vXG[0]}, s36, v{vXG[0]}
    v_add_u32 v{vXG[1]}, {8*1280}, v{vXG[0]}
    v_lshl_add_u32 v{vXG[0]}, v{vT2}, 4, v{vXG[0]}
    v_xor_b32 v{vT2}, 4, v{vT2}
    v_lshl_add_u32 v{vXG[1]}, v{vT2}, 4, v{vXG[1]}
    s_lshl_b32 s44, s34, 11
    """)
    def wsetup(stride):
        a(f"""
        v_bfe_u32 v{vT}, v1, 2, 2
        v_mul_u32_u24 v{vWG}, {stride}, v{vT}
        v_and_b32 v{vT}, 3, v1
        v_lshl_add_u32 v{vWG}, v{vT}, 4, v{vWG}
        v_lshrrev_b32 v{vT}, 4, v1
        v_lshl_add_u32 v{vWG}, v{vT}, 6, v{vWG}
        s_mul_i32 s46, s34, {8*stride}
        s_lshl_b32 s36, s33, 8
        s_add_u32 s46, s46, s36
        s_mov_b32 s45, 0
        """)
    toks = {}
    a.vm_issued = 0
    def loads(st):
        slot = st % 4
        stride = 3840 if st < 10 else 3456
        if st == 0: wsetup(3840)
        if st == 10:
            srd(a, 12, 52, D * F * 2)
            wsetup(3456)
        for j in range(2):
            a(f"s_add_u32 m0, s44, {slot*SLOT + j*1024}")
            a("s_nop 0")
            a.vm(f"buffer_load_dwordx4 v{vXG[j]}, s[8:11], s45 offen lds")
            a(f"s_add_u32 m0, s44, {slot*SLOT + 16384 + j*1024}")
            a("s_nop 0")
            toks[st] = a.vm(f"buffer_load_dwordx4 v{vWG}, s[12:15], s46 offen lds")
            a(f"s_add_u32 s46, s46, {4*stride if j < 1 else 60*stride}")
        a("s_add_u32 s45, s45, 128")
    def fetch_stats():
        L = uid("NOST")
        a(f"""
        s_cmp_lg_u32 s34, 7
        s_cbranch_scc1 {L}
        s_lshl_b32 s36, s32, 2
        s_add_u32 s36, s36, {DB_ST*4}
        v_mov_b32 v{vT}, s36
        v_mov_b32 v{vT2}, 1
        """)
        poll(a, vT, vT2, vT3, 4, DBG)
        a(f"""
        s_mul_i32 s36, s32, 1536
        s_add_u32 s36, s36, {WS_STAT}
        v_lshlrev_b32 v{vT}, 3, v1
        buffer_load_dwordx2 v[146:147], v{vT}, s[16:19], s36 offen sc1
        buffer_load_dwordx2 v[148:149], v{vT}, s[16:19], s36 offen offset:512 sc1
        buffer_load_dwordx2 v[150:151], v{vT}, s[16:19], s36 offen offset:1024 sc1
        v_add_u32 v{vT}, {L_MEAN}, v{vT}
        s_waitcnt vmcnt(0)
        ds_write_b64 v{vT}, v[146:147]
        ds_write_b64 v{vT}, v[148:149] offset:512
        ds_write_b64 v{vT}, v[150:151] offset:1024
        s_waitcnt lgkmcnt(0)
        """)
        a.label(L)
    for st in range(3):
        loads(st)
    for st in range(7):
        a.wait_vm(toks[st])
        a("s_barrier")
        loads(st + 3)
    a(f"""
    s_cmp_eq_u32 s33, 14
    s_cbranch_scc1 H_TYPEB
    """)
    save = a.vm_issued
    for st in range(7, 17):
        a.wait_vm(toks[st])
        a("s_barrier")
        loads(st + 3)
        if st == 9:
            a("s_barrier")
    for st in range(17, 20):
        a.wait_vm(toks[st])
        a("s_barrier")
    a.label("H_TAIL")
    at.run()
    a.label("H_TYPEB")
    a.vm_issued = save
    for st in range(7, 10):
        a.wait_vm(toks[st])
        a("s_barrier")
    a("s_barrier")
    a.label("K_PREP")
    gen_prep(a)
    a(f"""
    s_barrier
    s_cmp_ge_u32 s3, 4
    s_cbranch_scc1 H_TAIL
    s_branch M_FFN2
    """)
    a.label("K_STATS")
    gen_stats(a)
    a("s_branch K_PREP")

    a.label("K_MFMA")
    ACC = 64; FR = 32
    vXA = [[2, 3, 4, 5], [160, 161, 162, 163]]
    vWA = [[6, 11], [164, 165]]
    vM, vHH, vT, vT2 = 7, 8, 9, 10
    vEA = 12; vSEL = 24; vCSA = 28; EP = 128
    a(f"""
    s_lshr_b32 s34, s3, 1                ; wm
    s_and_b32 s35, s3, 1                 ; wn
    s_xor_b32 s43, s34, 1
    v_and_b32 v{vM}, 31, v1
    v_lshrrev_b32 v{vHH}, 5, v1
    v_bfe_u32 v{vT}, v{vM}, 1, 3
    v_xor_b32 v{vT}, v{vT}, v{vHH}
    v_lshlrev_b32 v{vT}, 4, v{vT}
    v_lshl_add_u32 v{vT}, v{vM}, 7, v{vT}
    s_lshl_b32 s36, s34, 13
    v_add_u32 v{vXA[0][0]}, s36, v{vT}
    v_xor_b32 v{vXA[0][1]}, 32, v{vXA[0][0]}
    v_xor_b32 v{vXA[0][2]}, 64, v{vXA[0][0]}
    v_xor_b32 v{vXA[0][3]}, 0x60, v{vXA[0][0]}
    v_and_b32 v{vT}, 15, v1
    v_bfe_u32 v{vT2}, v1, 4, 1
    v_cmp_eq_u32 vcc, v{vT}, v{vT2}
    v_mov_b32 v{vT}, 0x3f803f80
    s_nop 1
    v_cndmask_b32 v{vSEL}, 0, v{vT}, vcc
    v_cndmask_b32 v{vSEL+1}, 0, v{vT}, vcc
    v_cndmask_b32 v{vSEL+2}, 0, v{vT}, vcc
    v_cndmask_b32 v{vSEL+3}, 0, v{vT}, vcc
    """)
    tr_pattern(a, vWA[0][0], 1, vT, 2048)
    a(f"""
    s_lshl_b32 s36, s35, 9
    s_add_u32 s36, s36, 16384
    s_lshl_b32 s37, s34, 8
    s_add_u32 s36, s36, s37
    v_add_u32 v{vWA[0][0]}, s36, v{vWA[0][0]}
    v_xor_b32 v{vWA[0][1]}, 0x100, v{vWA[0][0]}
    """)
    for i in range(4):
        a(f"v_add_u32 v{vXA[1][i]}, {2*SLOT}, v{vXA[0][i]}")
    for i in range(2):
        a(f"v_add_u32 v{vWA[1][i]}, {2*SLOT}, v{vWA[0][i]}")
    vW1, vW2, vW3, vWD = 144, 145, 146, 148
    def warm_setup():
        a(f"""
        v_lshrrev_b32 v{vT}, 4, v1
        v_and_b32 v{vT2}, 15, v1
        v_lshlrev_b32 v{vT2}, 4, v{vT2}
        v_mul_u32_u24 v{vW1}, 3840, v{vT}
        v_add_u32 v{vW1}, v{vW1}, v{vT2}
        v_mul_u32_u24 v{vW2}, 3456, v{vT}
        v_add_u32 v{vW2}, v{vW2}, v{vT2}
        v_mul_u32_u24 v{vW3}, 1280, v{vT}
        v_add_u32 v{vW3}, v{vW3}, v{vT2}
        s_and_b32 s36, s32, 3
        s_lshl_b32 s36, s36, 2
        s_lshl_b32 s37, s3, 4
        s_add_u32 s36, s36, s37
        s_lshl_b32 s38, s33, 8
        s_mul_i32 s83, s36, 3840
        s_add_u32 s83, s83, s38
        s_add_u32 s83, s83, {3*64*3840}
        s_mul_i32 s84, s36, 3456
        s_add_u32 s84, s84, s38
        s_and_b32 s85, s33, 7
        s_lshl_b32 s85, s85, 4
        s_lshl_b32 s36, s3, 2
        s_add_u32 s85, s85, s36
        s_lshl_b32 s36, s32, 7
        s_add_u32 s85, s85, s36
        s_mul_i32 s85, s85, 1280
        """)
        srd(a, 20, 52, D * F * 2)
    def warm_a():
        if 'w' in ABL: return
        for st in range(3, 10):
            if st % 2 == 1:
                a(f"buffer_load_dwordx4 {vr(vWD,4)}, v{vW3}, s[8:11], s85 offen offset:{(st//2)*256}")
            a(f"buffer_load_dwordx4 {vr(vWD,4)}, v{vW1}, s[12:15], s83 offen")
            a(f"s_add_u32 s83, s83, {64*3840}")
    def warm_b():
        if 'w' in ABL: return
        a(f"buffer_load_dwordx4 {vr(vWD,4)}, v{vW2}, s[20:23], s84 offen")
        a(f"s_add_u32 s84, s84, {64*3456}")
    SF = 128
    def st_flag():
        L = uid("SF")
        a(f"""
        v_and_b32 v{SF}, 15, v1
        v_lshlrev_b32 v{SF}, 2, v{SF}
        v_mov_b32 v{SF+1}, 1
        s_cmp_lg_u32 s3, 3
        s_cbranch_scc1 {L}
        buffer_load_dword v{SF+2}, v{SF}, {DBG}, 0 offen sc1
        """)
        a.label(L)
    def st_load():
        L = uid("SL")
        a(f"""
        s_cmp_lg_u32 s3, 3
        s_cbranch_scc1 {L}
        s_waitcnt vmcnt(0)
        v_cmp_gt_u32 vcc, v{SF+1}, v{SF+2}
        s_nop 1
        s_cbranch_vccz {L}_GO
        """)
        poll(a, SF, SF + 1, SF + 2, 4, DBG)
        a.label(L + "_GO")
        a(f"""
        s_mul_i32 s36, s32, 1536
        s_add_u32 s36, s36, {WS_STAT}
        v_lshlrev_b32 v{SF}, 3, v1
        buffer_load_dwordx2 {vr(SF+2,2)}, v{SF}, s[16:19], s36 offen sc1
        buffer_load_dwordx2 {vr(SF+4,2)}, v{SF}, s[16:19], s36 offen offset:512 sc1
        buffer_load_dwordx2 {vr(SF+6,2)}, v{SF}, s[16:19], s36 offen offset:1024 sc1
        v_add_u32 v{SF}, {L_MEAN}, v{SF}
        """)
        a.label(L)
    def st_store():
        L = uid("SS")
        a(f"""
        s_cmp_lg_u32 s3, 3
        s_cbranch_scc1 {L}
        s_waitcnt vmcnt(0)
        ds_write_b64 v{SF}, {vr(SF+2,2)}
        ds_write_b64 v{SF}, {vr(SF+4,2)} offset:512
        ds_write_b64 v{SF}, {vr(SF+6,2)} offset:1024
        """)
        a.label(L)
    g1hooks = {2 + 2 * i: warm_b for i in range(10)}
    g1hooks[25] = st_flag; g1hooks[32] = st_load; g1hooks['end'] = st_store
    warm_setup()
    a(f"""
    s_cmp_ge_u32 s33, 10
    s_cbranch_scc1 M_V
    """)
    snb = [34, 43]
    def read_ops(t, st0):
        st, s = st0 + t // 4, t % 4
        slot = st % 4
        hs, so = slot // 2, (slot % 2) * SLOT
        f = FR + 16 * (t % 2)
        ops = []
        for r in range(2):
            ops.append(f"ds_read_b64_tr_b16 {vr(f+8+2*r,2)}, v{vWA[hs][0]} offset:{so+s*4096+r*1024}")
        ops.append(f"ds_read_b128 {vr(f,4)}, v{vXA[hs][s]} offset:{so}")
        ops.append(f"ds_read_b128 {vr(f+4,4)}, v{vXA[hs][s]} offset:{so+4096}")
        for r in range(2):
            ops.append(f"ds_read_b64_tr_b16 {vr(f+12+2*r,2)}, v{vWA[hs][1]} offset:{so+s*4096+r*1024}")
        return ops
    def mainloop(vtype, st0, hooks={}, last=False):
        a("s_barrier")
        if 'g' in ABL and st0 == 0: a.ts_mark(3)
        for o in read_ops(0, st0): a(o)
        for t in range(40):
            a("s_waitcnt lgkmcnt(0)")
            if 'g' in ABL and st0 == 0 and t == 12: a.ts_mark(4)
            if 'g' in ABL and st0 == 0 and t == 24: a.ts_mark(5)
            if 'g' in ABL and st0 == 0 and t == 39: a.ts_mark(6)
            if t in hooks: hooks[t]()
            rops = []
            if t + 1 < 40:
                if (t + 1) % 4 == 0:
                    a("s_barrier")
                rops = read_ops(t + 1, st0)
            f = FR + 16 * (t % 2)
            mf = []
            c = vr(vCSA, 4) if t > 0 else "0"
            order = [(0, 0), (0, 1), (1, 0), (1, 1)] if not vtype else [(0, 0), (1, 0), (0, 1), (1, 1)]
            for i, j in order:
                d = ACC + 16 * (2 * i + j)
                cc = vr(d, 16) if t > 0 else "0"
                if not vtype:
                    mf.append(f"v_mfma_f32_32x32x16_bf16 {vr(d,16)}, {vr(f+8+4*i,4)}, {vr(f+4*j,4)}, {cc}")
                else:
                    mf.append(f"v_mfma_f32_32x32x16_bf16 {vr(d,16)}, {vr(f+4*i,4)}, {vr(f+8+4*j,4)}, {cc}")
            mf.insert(3, f"v_mfma_f32_16x16x32_bf16 {vr(vCSA,4)}, {vr(vSEL,4)}, {vr(f+8,4)}, {c}")
            for k, m in enumerate(mf):
                a(m)
                for o in rops[2*k:2*k+2]: a(o)
        if 'end' in hooks: hooks['end']()
        a(f"""
        s_lshl_b32 s36, s35, 8
        s_lshl_b32 s37, s34, 7
        s_add_u32 s36, s36, s37
        s_add_u32 s36, s36, {L_CS}
        v_lshl_add_u32 v{vT}, v1, 2, s36
        s_mov_b64 exec, 0xffff
        s_nop 3
        ds_write_b32 v{vT}, v{vCSA}
        ds_write_b32 v{vT}, v{vCSA+1} offset:64
        s_mov_b64 exec, -1
        s_waitcnt vmcnt(0) lgkmcnt(0)
        """)
        if not last:
            a("s_barrier")
        else:
            lds_sync(a, L_CNTF, 4, 20)
    def ln_rows():
        a(f"""
        s_lshl_b32 s36, s34, 8
        s_add_u32 s36, s36, {L_MEAN}
        v_lshl_add_u32 v{vT}, v{vM}, 2, s36          ; (64wm+m)*4
        s_lshl_b32 s36, s35, 8
        s_lshl_b32 s37, s34, 7
        s_add_u32 s36, s36, s37
        s_add_u32 s36, s36, {L_CS}
        v_lshl_add_u32 v{vT2}, v{vHH}, 4, s36        ; (64wn+32nb0+4hh)*4
        v_xor_b32 v{vCSA}, 0x80, v{vT2}              ; slot 1
        ds_read_b32 v20, v{vT}
        ds_read_b32 v21, v{vT} offset:128
        ds_read_b32 v22, v{vT} offset:512
        ds_read_b32 v23, v{vT} offset:640
        """)
        for i in range(2):
            for aa in range(4):
                a(f"ds_read_b128 {vr(EP+16*i+4*aa,4)}, v{vT2 if i == 0 else vCSA} offset:{32*aa}")
    a(f"""
    s_cmp_ge_u32 s33, 5
    s_cselect_b32 s38, 5, 0
    s_sub_u32 s36, s33, s38
    s_lshl_b32 s36, s36, 5
    s_lshl_b32 s37, s35, 4
    s_add_u32 s36, s36, s37              ; ubase
    s_lshl_b32 s37, s32, 2
    s_lshl_b32 s38, s34, 1
    s_add_u32 s37, s37, s38
    s_mov_b32 s39, {QBLK}
    s_mov_b32 s40, {WS_Q}
    s_movk_i32 s41, 1280
    s_cmp_ge_u32 s33, 5
    s_cselect_b32 s39, {KV_TILE}, s39
    s_cselect_b32 s40, {WS_KV}, s40
    s_cselect_b32 s41, {KV_HEAD}, s41
    s_mul_i32 s44, s37, s39
    s_add_u32 s44, s44, s40
    s_add_u32 s45, s44, s39
    """)
    for i in range(2):
        a(f"""
        s_lshl_b32 s38, s{snb[i]}, 3
        s_add_u32 s38, s38, s36
        v_add_u32 v{vT2}, s38, v{vHH}
        """)
        for aa in range(4):
            e = vEA + i * 4 + aa
            a(f"""
            v_add_u32 v20, {2*aa}, v{vT2}           ; u
            v_mul_u32_u24 v21, 205, v20
            v_lshrrev_b32 v21, 10, v21              ; u/5
            v_mul_u32_u24 v22, 5, v21
            v_sub_u32 v20, v20, v22                 ; u%5
            v_mul_lo_u32 v{e}, v21, s41
            v_lshl_add_u32 v{e}, v20, 8, v{e}
            v_lshl_add_u32 v{e}, v{vM}, 3, v{e}
            """)
    warm_a()
    mainloop(False, 0, g1hooks)
    a.ts_mark(1)
    ln_rows()
    a(f"""
    s_cmp_lt_u32 s33, 5
    s_cselect_b32 s36, {f32(QSCALE)}, 1.0
    s_waitcnt lgkmcnt(0)
    v_mul_f32 v22, s36, v22
    v_mul_f32 v23, s36, v23
    """)
    for mb in range(2):
        for i in range(2):
            for aa in range(4):
                d = ACC + 16 * (2 * i + mb) + 4 * aa
                for b in range(4):
                    a(f"v_fma_f32 v{d+b}, -v{20+mb}, v{EP+16*i+4*aa+b}, v{d+b}")
                for b in range(4):
                    a(f"v_mul_f32 v{d+b}, v{22+mb}, v{d+b}")
                a(f"v_cvt_pk_bf16_f32 v{d}, v{d}, v{d+1}")
                a(f"v_cvt_pk_bf16_f32 v{d+1}, v{d+2}, v{d+3}")
                a(f"buffer_store_dwordx2 {vr(d,2)}, v{vEA+i*4+aa}, s[16:19], s{44+mb} offen sc1")
    a("s_branch M_G2")
    a.label("M_V")
    a(f"""
    s_sub_u32 s36, s33, 10
    s_lshl_b32 s36, s36, 7
    s_lshl_b32 s37, s35, 6
    s_add_u32 s36, s36, s37
    s_lshl_b32 s37, s32, 2
    s_lshl_b32 s38, s34, 1
    s_add_u32 s37, s37, s38              ; tile0
    s_mul_i32 s44, s37, {KV_TILE}
    s_add_u32 s44, s44, {WS_KV+1280}
    s_mov_b32 s37, {KV_HEAD}
    """)
    for i in range(2):
        e = vEA + i
        a(f"""
        s_lshl_b32 s38, s{snb[i]}, 5
        s_add_u32 s38, s38, s36
        v_add_u32 v20, s38, v{vM}               ; c
        v_mul_u32_u24 v21, 3277, v20
        v_lshrrev_b32 v21, 16, v21              ; h = c/20
        v_mul_u32_u24 v22, 20, v21
        v_sub_u32 v20, v20, v22                 ; d
        v_mul_lo_u32 v{e}, v21, s37
        v_lshl_add_u32 v{e}, v20, 4, v{e}
        v_mul_u32_u24 v22, 320, v{vHH}
        v_add_u32 v{e}, v{e}, v22
        """)
    warm_a()
    mainloop(True, 0, g1hooks)
    a.ts_mark(1)
    a(f"""
    s_lshl_b32 s36, s35, 8
    s_lshl_b32 s37, s34, 7
    s_add_u32 s36, s36, s37
    s_add_u32 s36, s36, {L_CS}
    v_lshl_add_u32 v{vT}, v{vM}, 2, s36          ; (64wn+32nb0+n)*4
    v_xor_b32 v{vCSA}, 0x80, v{vT}
    s_lshl_b32 s36, s34, 8
    s_add_u32 s36, s36, {L_RINV}
    v_lshl_add_u32 v{vT2}, v{vHH}, 4, s36        ; (64wm+4hh)*4
    ds_read_b32 v20, v{vT}
    ds_read_b32 v21, v{vCSA}
    """)
    for mb in range(2):
        for aa in range(4):
            a(f"ds_read_b128 {vr(EP+16*mb+4*aa,4)}, v{vT2} offset:{128*mb+32*aa}")
            a(f"ds_read_b128 {vr(FR+16*mb+4*aa,4)}, v{vT2} offset:{512+128*mb+32*aa}")
    a("s_waitcnt lgkmcnt(0)")
    for mb in range(2):
        for i in range(2):
            for j in range(2):
                d = ACC + 16 * (2 * mb + i) + 8 * j
                for e in range(8):
                    a(f"v_mul_f32 v{d+e}, v{EP+16*mb+8*j+e}, v{d+e}")
                for e in range(8):
                    a(f"v_fma_f32 v{d+e}, -v{FR+16*mb+8*j+e}, v{20+i}, v{d+e}")
                for e in range(4):
                    a(f"v_cvt_pk_bf16_f32 v{d+e}, v{d+2*e}, v{d+2*e+1}")
                a(f"buffer_store_dwordx4 {vr(d,4)}, v{vEA+i}, s[16:19], s44 offen offset:{mb*KV_TILE+j*640} sc1")
    a(f"""
    s_cmp_lg_u32 s33, 14
    s_cbranch_scc1 M_G2
    """)
    publish(a, L_CNTQ, 4, 82, 12)
    a("s_branch K_PREP")
    a.label("M_G2")
    a.ts_mark(2)
    BIAS = 12
    def hook_pub():
        publish(a, L_CNTQ, 4, 82, EP)
        srd(a, 56, 54, F * 2)
        a(f"v_lshlrev_b32 v{vT}, 3, v{vHH}")
        for i in range(2):
            a(f"""
            s_lshl_b32 s36, s33, 8
            s_lshl_b32 s37, s35, 7
            s_add_u32 s36, s36, s37
            s_lshl_b32 s37, s{snb[i]}, 6
            s_add_u32 s36, s36, s37
            """)
            for aa in range(4):
                r = (12 + 2 * aa) if i == 0 else (152 + 2 * aa)
                a(f"buffer_load_dwordx2 {vr(r,2)}, v{vT}, s[56:59], s36 offen offset:{16*aa}")
    def cq_issue():
        L = uid("CQI")
        shard_regs(a, EP + 4, EP + 5, CN_Q, 15)
        a(f"""
        s_cmp_lg_u32 s3, 2
        s_cbranch_scc1 {L}
        buffer_load_dword v{EP+6}, v{EP+4}, s[16:19], 0 offen sc1
        """)
        a.label(L)
    def cq_check():
        L = uid("CQC")
        a(f"""
        s_cmp_lg_u32 s3, 2
        s_cbranch_scc1 {L}
        s_waitcnt vmcnt(0)
        v_cmp_gt_u32 vcc, v{EP+5}, v{EP+6}
        s_nop 1
        s_cbranch_vccnz {L}
        """)
        lds_add(a, L_RELA, EP + 8)
        a("s_waitcnt lgkmcnt(0)")
        a.label(L)
    a("s_setprio 3")
    mainloop(False, 10, {int(os.environ.get('PUBT', '12')): hook_pub, 29: cq_issue, 35: cq_check}, last=True)
    a("s_waitcnt vmcnt(0)")
    if 'g' not in ABL: a.ts_mark(3)
    for k in range(8):
        a(f"v_mov_b32 v{FR+k}, v{152+k}")
    ln_rows()
    a(f"""
    s_lshl_b32 s36, s33, 2
    s_lshl_b32 s37, s35, 1
    s_add_u32 s36, s36, s37
    s_lshl_b32 s37, s32, 2
    s_lshl_b32 s38, s34, 1
    s_add_u32 s37, s37, s38
    s_lshl_b32 s37, s37, 10              ; (4mt+2wm)*1024
    s_add_u32 s37, s37, {WS_H}
    s_add_u32 s44, s36, s34
    s_lshl_b32 s44, s44, 17
    s_add_u32 s44, s44, s37              ; slot 0
    s_add_u32 s45, s36, s43
    s_lshl_b32 s45, s45, 17
    s_add_u32 s45, s45, s37              ; slot 1
    s_mov_b32 s39, {f32(gemm.C2)}
    v_mov_b32 v{vT}, {f32(gemm.C1)}
    v_lshlrev_b32 v{vT2}, 4, v1
    s_waitcnt lgkmcnt(0)
    """)
    TT = FR + 8
    for i in range(2):
        for half in range(2):
            for mb in range(2):
                d = ACC + 16 * (2 * i + mb) + 8 * half
                for e in range(8):
                    a(f"v_fma_f32 v{d+e}, -v{20+mb}, v{EP+16*i+8*half+e}, v{d+e}")
                vb = (12 if i == 0 else FR) + 4 * half
                for e in range(4):
                    a(f"v_lshlrev_b32 v{TT+2*e}, 16, v{vb+e}")
                    a(f"v_and_b32 v{TT+2*e+1}, 0xffff0000, v{vb+e}")
                for e in range(8):
                    a(f"v_fma_f32 v{d+e}, v{d+e}, v{22+mb}, v{TT+e}")
                gemm.gelu(a, d, TT, 39, vT)
                gemm.pack8(a, d, d)
                a(f"buffer_store_dwordx4 {vr(d,4)}, v{vT2}, s[16:19], s{44+i} offen offset:{1024*mb} sc1")
            a(f"s_add_u32 s{44+i}, s{44+i}, 65536")
    a(f"""
    s_lshl_b32 s37, s32, 8
    s_add_u32 s37, s37, {CN_H}
    """)
    publish(a, L_CNTH, 4, 37, 12)
    a.label("M_FFN2")
    if 'g' not in ABL: a.ts_mark(4)
    gen_ffn2(a)
    a.label("K_END")
    a("s_endpgm")
    return a.text(), kernel_desc(NAME, 168), f"; @launch grid=(256,1,1) block=(768,1,1) lds={LDS_TOTAL}"
```

```python
from asmlib import *
from layout import *
import os
ABL = os.environ.get('ABL', '')

class Attn:
    def __init__(s, a):
        s.a = a
    def run(s):
        import mega as M
        a = s.a
        LT, LCH = M.LT, M.LCH
        Q = [4, 10]
        AD = [[16, 17, 18, 19], [20, 21]]
        AD0 = 136
        vT, vT2, vPW, vPR, vPV = 24, 25, 26, 27, 28
        vHH, vM, vVG, vL16, vKG = 29, 30, 31, 2, 3
        P = 32
        KF = [40, 46]
        VF = [52, 60]
        SS = [68, 84]
        O = [100, 116]
        vPC, vPD, vPL = 132, 133, 134
        BAL = int(os.environ.get('BAL', '2'))
        PLO, PHI = 1, 2
        a(f"""
        s_setprio {PLO}
        s_sub_u32 s39, s3, 4                  ; aw
        v_and_b32 v{vM}, 31, v1
        v_lshrrev_b32 v{vHH}, 5, v1
        v_lshlrev_b32 v{vL16}, 4, v1
        s_lshr_b32 s34, s39, 2
        s_and_b32 s35, s39, 3                 ; q group
        s_lshl_b32 s40, s34, 5
        s_add_u32 s40, s40, s35
        s_mul_i32 s40, s40, {KV_TILE}
        s_mul_i32 s41, s80, {KV_HEAD}
        s_add_u32 s40, s40, s41
        s_add_u32 s40, s40, {WS_KV}
        s_mul_i32 s41, s39, {LT}
        s_mov_b32 s46, {M.VMASK}
        s_mov_b32 s47, {M.VMASK}
        v_lshlrev_b32 v{vKG}, 3, v{vM}
        v_lshl_add_u32 v{vKG}, v{vHH}, 8, v{vKG}
        s_lshl_b32 s36, s81, 3
        s_lshl_b32 s37, s35, 1
        s_add_u32 s36, s36, s37
        s_add_u32 s48, s36, s34
        s_xor_b32 s49, s48, 1
        s_mul_i32 s38, s80, 1280
        s_cmp_lg_u32 s39, 0
        s_cbranch_scc1 AT_WAITQ
        """)
        a(f"""
        v_mov_b32 v{vT}, {M.L_RELA}
        ds_read_b32 v{vT2}, v{vT}
        s_waitcnt lgkmcnt(0)
        v_cmp_ne_u32 vcc, 0, v{vT2}
        s_nop 1
        s_cbranch_vccnz AT_GO
        """)
        M.shard_regs(a, vT, vT2, CN_Q, 15)
        M.poll(a, vT, vT2, vPW, 4)
        M.lds_add(a, M.L_RELA, vT)
        a("s_branch AT_GO")
        a.label("AT_WAITQ")
        M.lds_wait(a, M.L_RELA, 1, vT, 2)
        a.label("AT_GO")
        a.ts_mark(1)
        def dma(c):
            a(f"""
            s_add_u32 m0, s41, {(c % 4) * LCH}
            s_mov_b64 exec, 0xffffffff
            buffer_load_dwordx4 v{vL16}, s[16:19], s40 offen offset:2048 sc1 lds
            s_mov_b64 exec, -1
            buffer_load_dwordx4 v{vL16}, s[16:19], s40 offen sc1 lds
            buffer_load_dwordx4 v{vL16}, s[16:19], s40 offen offset:1024 sc1 lds
            s_add_u32 s40, s40, {4 * KV_TILE}
            """)
        dma(0)
        for i in range(2):
            a(f"""
            s_mul_i32 s37, s{48+i}, {QBLK}
            s_add_u32 s37, s37, s38
            buffer_load_dwordx2 {vr(Q[i],2)}, v{vKG}, s[16:19], s37 offen offset:{WS_Q} sc1
            buffer_load_dwordx2 {vr(Q[i]+2,2)}, v{vKG}, s[16:19], s37 offen offset:{WS_Q+512} sc1
            buffer_load_dwordx2 {vr(Q[i]+4,2)}, v{vKG}, s[16:19], s37 offen offset:{WS_Q+1024} sc1
            """)
        dma(1)
        dma(2)
        KA, KB, VA, VB = AD[0]
        a(f"""
        v_mul_u32_u24 v{vVG}, 320, v{vHH}
        v_lshl_add_u32 v{vVG}, v{vM}, 4, v{vVG}
        v_add_u32 v{vVG}, 1280, v{vVG}
        v_mov_b32 v{KA}, v{vKG}
        v_mov_b32 v{KB}, {KV_TILE}
        v_mov_b32 v{VA}, {KV_TILE}
        v_mov_b32 v{VB}, {KV_TILE}
        s_mov_b64 exec, s[46:47]
        v_mov_b32 v{VA}, v{vVG}
        v_add_u32 v{VB}, 640, v{vVG}
        s_mov_b64 exec, 0xffffffff
        v_add_u32 v{KB}, 1024, v{vKG}
        s_mov_b64 exec, -1
        s_lshl_b32 s36, s39, 2
        s_add_u32 s36, s36, {M.L_APROG}
        v_mov_b32 v{vPW}, s36
        v_and_b32 v{vPR}, 7, v1
        v_lshlrev_b32 v{vPR}, 2, v{vPR}
        v_add_u32 v{vPR}, {M.L_APROG}, v{vPR}
        v_mov_b32 v{vPV}, 1
        s_lshl_b32 s36, s35, 2
        s_add_u32 s36, s36, {M.L_PAIR}
        v_mov_b32 v{vPC}, s36
        s_lshl_b32 s45, s34, 1
        s_sub_u32 s45, 1, s45                     ; +1 or -1
        v_mov_b32 v{vPD}, s45
        """)
        for b in range(2):
            for i in range(8):
                a(f"v_mov_b32 v{VF[b]+i}, 0x3f803f80")
        a(f"""
        v_and_b32 v{vT}, 3, v1
        v_mul_u32_u24 v{vT}, {LCH}, v{vT}
        v_add_u32 v{vT}, s41, v{vT}
        ds_write_b128 v{vT}, {vr(VF[0],4)} offset:{KV_TILE}
        """)
        for b in range(2):
            for i in range(16):
                a(f"v_mov_b32 v{O[b]+i}, 0")
        for i in range(8):
            a(f"v_mov_b32 v{P+i}, 0")
        a(f"""
        s_waitcnt vmcnt(6) lgkmcnt(0)
        ds_write_b32 v{vPW}, v{vPV}
        s_mov_b32 s43, 1
        """)
        a.label("AT_W0")
        a(f"""
        s_add_u32 s101, s101, 1
        s_cmp_gt_u32 s101, 0x40000
        s_cbranch_scc1 K_END
        ds_read_b32 v{vT}, v{vPR}
        s_waitcnt lgkmcnt(0)
        v_cmp_gt_u32 vcc, s43, v{vT}
        s_nop 1
        s_cbranch_vccnz AT_W0
        """)
        a.ts_mark(2)
        def rdK(kt):
            h = 0 if kt < 4 else 1
            a(f"ds_read_b64 {vr(KF[kt%2],2)}, v{AD[h][0]} offset:{(kt%4)*LT}")
            a(f"ds_read_b64 {vr(KF[kt%2]+2,2)}, v{AD[h][0]} offset:{(kt%4)*LT+512}")
            a(f"ds_read_b64 {vr(KF[kt%2]+4,2)}, v{AD[h][1]} offset:{(kt%4)*LT}")
        def rdV(kt):
            a(f"ds_read_b128 {vr(VF[kt%2],4)}, v{AD[0][2]} offset:{kt*LT}")
            a(f"ds_read_b128 {vr(VF[kt%2]+4,4)}, v{AD[0][3]} offset:{kt*LT}")
        def qka(sb, kb, q):
            a(f"v_mfma_f32_32x32x16_bf16 {vr(SS[sb],16)}, {vr(KF[kb],4)}, {vr(Q[q],4)}, 0")
        def qkb(sb, kb, q):
            a(f"v_mfma_f32_32x32x8_bf16 {vr(SS[sb],16)}, {vr(KF[kb]+4,2)}, {vr(Q[q]+4,2)}, {vr(SS[sb],16)}")
        def pv(vb, j, q):
            a(f"v_mfma_f32_32x32x16_bf16 {vr(O[q],16)}, {vr(VF[vb]+4*j,4)}, {vr(P+4*j,4)}, {vr(O[q],16)}")
        def rowmax(sr_, dst, tmp, extra=None):
            a(f"v_max3_f32 v{dst}, v{sr_}, v{sr_+1}, v{sr_+2 if extra is None else extra}")
            lo = 3 if extra is None else 2
            for i in range(lo, 15, 2):
                a(f"v_max3_f32 v{dst}, v{dst}, v{sr_+i}, v{sr_+i+1}")
            if extra is None:
                a(f"v_max_f32 v{dst}, v{dst}, v{sr_+15}")
            a(f"""
            v_mov_b32 v{tmp}, v{dst}
            s_nop 1
            v_permlane32_swap_b32 v{dst}, v{tmp}
            v_max_f32 v{dst}, v{dst}, v{tmp}
            """)
        a(f"ds_read_b64 {vr(KF[1],2)}, v{KA}")
        a(f"ds_read_b64 {vr(KF[1]+2,2)}, v{KA} offset:512")
        a(f"ds_read_b64 {vr(KF[1]+4,2)}, v{KB}")
        a(f"s_mul_i32 s36, s34, {4*LT}")
        for i in range(4):
            a(f"v_add_u32 v{AD[0][i]}, s36, v{AD[0][i]}")
        for i in range(4):
            a(f"v_mov_b32 v{AD0+i}, v{AD[0][i]}")
        for i in range(2):
            a(f"v_add_u32 v{AD[1][i]}, {LCH}, v{AD[0][i]}")
        rdK(0)
        a(f"""
        s_mov_b32 exec_lo, 0
        v_mov_b32 v{Q[0]+4}, 0
        v_mov_b32 v{Q[0]+5}, 0
        v_mov_b32 v{Q[1]+4}, 0
        v_mov_b32 v{Q[1]+5}, 0
        s_mov_b64 exec, -1
        s_waitcnt lgkmcnt(3)
        """)
        qka(0, 1, 0); qkb(0, 1, 0)
        qka(1, 1, 1); qkb(1, 1, 1)
        rdK(1)
        a("s_nop 10")
        rowmax(SS[0], vT, vT2)
        rowmax(SS[1], P, P + 1)
        a(f"""
        s_mov_b32 exec_lo, 0
        v_cvt_pk_bf16_f32 v{Q[0]+4}, -v{vT}, 0
        v_cvt_pk_bf16_f32 v{Q[1]+4}, -v{P}, 0
        s_mov_b64 exec, -1
        v_mov_b32 v{P}, 0
        v_mov_b32 v{P+1}, 0
        """)
        for i in range(4):
            a(f"v_mov_b32 v{SS[1]+12+i}, 0")
        a("s_waitcnt lgkmcnt(0)")
        qka(0, 0, 0); qkb(0, 0, 0)
        a(f"""
        s_mov_b32 s43, 2
        s_mov_b32 s44, {LCH}
        s_mov_b32 s42, {3*LCH}
        v_mov_b32 v{vPV}, 2
        s_waitcnt vmcnt(3)
        ds_write_b32 v{vPW}, v{vPV}
        s_nop 4
        """)
        a.raw(".p2align 6")
        a.label("AT_LOOP")
        for u in range(8):
            cur, nxt = u % 2, 1 - u % 2
            tt = u
            sc, sp = SS[cur], SS[nxt]
            ex = lambda i: a(f"v_exp_f32 v{sc+i}, v{sc+i}")
            cv = lambda i: a(f"v_cvt_pk_bf16_f32 v{P+i}, v{sc+2*i}, v{sc+2*i+1}")
            cvp = lambda i: a(f"v_cvt_pk_bf16_f32 v{P+i}, v{sp+2*i}, v{sp+2*i+1}")
            vprev = ((u - 1) // 2) % 2
            knext = ((u + 1) // 2) % 2
            pv(vprev, 0, nxt)
            if u % 2 == 0:
                rdV(u // 2)
            else:
                rdK((u - 1) // 2 + 2)
            if tt == 4:
                a(f"ds_read_b32 v{vT}, v{vPR}")
            bal = BAL and u % BAL == BAL - 1
            if bal:
                a(f"""
                s_mov_b64 exec, 1
                ds_add_rtn_u32 v{vPL}, v{vPC}, v{vPD}
                s_mov_b64 exec, -1
                """)
            ex(0); ex(1); cvp(6); ex(2); cvp(7); ex(3)
            qka(nxt, knext, nxt)
            if tt == 7:
                a(f"s_waitcnt vmcnt(3)")
                a(f"ds_write_b32 v{vPW}, v{vPV}")
                a(f"s_add_u32 s36, s44, {LCH}")
                a(f"s_cmp_eq_u32 s36, {4*LCH}")
                a(f"s_cselect_b32 s36, 0, s36")
            ex(4); ex(5); cv(0); ex(6); cv(1); ex(7)
            qkb(nxt, knext, nxt)
            if tt == 7:
                for i in range(4):
                    a(f"v_add_u32 v{AD[0][i]}, s44, v{AD0+i}")
                for i in range(2):
                    a(f"v_add_u32 v{AD[1][i]}, s36, v{AD0+i}")
                a("s_mov_b32 s44, s36")
            ex(8); ex(9); cv(2); ex(10); cv(3); ex(11)
            pv(vprev, 1, nxt)
            a("s_waitcnt lgkmcnt(0)")
            if tt == 6:
                a("s_add_u32 s43, s43, 1")
                a(f"v_add_u32 v{vPV}, 1, v{vPV}")
            if bal:
                a(f"""
                v_readfirstlane_b32 s36, v{vPL}
                s_setprio {PLO}
                s_mul_i32 s36, s36, s45
                s_cmp_ge_i32 s36, 0
                s_cbranch_scc1 AT_BAL{u}
                s_setprio {PHI}
                """)
                a.label(f"AT_BAL{u}")
            if tt == 7:
                a("s_cmp_le_u32 s43, 9")
            if tt == 4:
                a(f"v_cmp_gt_u32 vcc, s43, v{vT}")
                ex(12)
                a(f"s_cbranch_vccnz AT_SPIN")
                a.label(f"AT_SPUN")
                a(f"""
                s_add_u32 s36, s41, s42
                s_cmp_le_u32 s43, 6
                s_cselect_b32 m0, s36, {M.L_DUMMY}
                s_cselect_b32 s37, s40, {WS_END}
                s_mov_b64 exec, 0xffffffff
                buffer_load_dwordx4 v{vL16}, s[16:19], s37 offen offset:2048 sc1 lds
                s_mov_b64 exec, -1
                buffer_load_dwordx4 v{vL16}, s[16:19], s37 offen sc1 lds
                buffer_load_dwordx4 v{vL16}, s[16:19], s37 offen offset:1024 sc1 lds
                s_add_u32 s40, s40, {4 * KV_TILE}
                s_add_u32 s42, s42, {LCH}
                s_cmp_eq_u32 s42, {4*LCH}
                s_cselect_b32 s42, 0, s42
                """)
                ex(13); cv(4); ex(14); cv(5); ex(15)
            else:
                ex(12); ex(13); cv(4); ex(14); cv(5); ex(15)
        a("s_cbranch_scc1 AT_LOOP")
        sp = SS[1]
        pv(1, 0, 1)
        a(f"v_cvt_pk_bf16_f32 v{P+6}, v{sp+12}, v{sp+13}")
        a(f"v_cvt_pk_bf16_f32 v{P+7}, v{sp+14}, v{sp+15}")
        a(f"v_mov_b32 v{vPV}, 100")
        a(f"s_lshl_b32 s36, s39, 12")
        pv(1, 1, 1)
        a.ts_mark(3)
        a(f"""
        v_add_u32 v{vT2}, s36, v{vL16}
        s_xor_b32 s37, s39, 4
        s_lshl_b32 s37, s37, 2
        s_add_u32 s37, s37, {M.L_APROG}
        v_mov_b32 v{vPR}, s37
        s_nop 7
        """)
        for i in range(4):
            a(f"ds_write_b128 v{vT2}, {vr(O[1]+4*i,4)} offset:{1024*i}")
        a(f"""
        s_waitcnt lgkmcnt(0)
        ds_write_b32 v{vPW}, v{vPV}
        v_xor_b32 v{vT2}, 0x4000, v{vT2}
        """)
        a.label("AT_XW")
        a(f"""
        ds_read_b32 v{vT}, v{vPR}
        s_waitcnt lgkmcnt(0)
        v_cmp_gt_u32 vcc, 100, v{vT}
        s_nop 1
        s_cbranch_vccz AT_XOK
        s_add_u32 s101, s101, 1
        s_cmp_gt_u32 s101, 0x40000
        s_cbranch_scc1 K_END
        s_sleep 1
        s_branch AT_XW
        """)
        a.label("AT_XOK")
        Oo = O[0]
        for i in range(4):
            a(f"ds_read_b128 {vr(O[1]+4*i,4)}, v{vT2} offset:{1024*i}")
        for i in range(4):
            a(f"s_waitcnt lgkmcnt({3-i})")
            for e in range(4):
                a(f"v_add_f32 v{Oo+4*i+e}, v{Oo+4*i+e}, v{O[1]+4*i+e}")
        a(f"v_mul_f32 v{vT}, 0, v{Oo}")
        for i in range(1, 12):
            a(f"v_fmac_f32 v{vT}, 0, v{Oo+i}")
        a(f"""
        v_add_f32 v{vT}, v{vT}, v{Oo+12}
        v_cmp_gt_f32 vcc, {f32(2.0**100)}, v{vT}
        s_nop 1
        s_cmp_eq_u64 vcc, exec
        s_cbranch_scc0 AT_SLOW
        """)
        a.label("AT_FIN")
        a(f"""
        v_rcp_f32 v{vT}, v{Oo+12}
        s_mul_i32 s36, s48, {QBLK}
        s_add_u32 s36, s36, s38
        s_add_u32 s36, s36, {WS_O}
        """)
        for aa in range(3):
            o = Oo + 4 * aa
            for b in range(4):
                a(f"v_mul_f32 v{o+b}, v{vT}, v{o+b}")
            a(f"v_cvt_pk_bf16_f32 v{P+2*aa}, v{o}, v{o+1}")
            a(f"v_cvt_pk_bf16_f32 v{P+2*aa+1}, v{o+2}, v{o+3}")
            if aa == 2:
                a("s_mov_b64 exec, 0xffffffff")
            a(f"buffer_store_dwordx2 {vr(P+2*aa,2)}, v{vKG}, s[16:19], s36 offen offset:{512*aa} sc1")
        a(f"""
        s_mov_b64 exec, -1
        s_lshl_b32 s37, s81, 8
        s_add_u32 s37, s37, {CN_O}
        """)
        M.publish(a, M.L_CNTO, 8, 37, SS[0])
        a.exit(0)
        a.label(f"AT_SPIN")
        a(f"""
        s_add_u32 s101, s101, 1
        s_cmp_gt_u32 s101, 0x40000
        s_cbranch_scc1 K_END
        s_sleep 1
        ds_read_b32 v{vT}, v{vPR}
        s_waitcnt lgkmcnt(0)
        v_cmp_gt_u32 vcc, s43, v{vT}
        s_nop 1
        s_cbranch_vccnz AT_SPIN
        s_branch AT_SPUN
        """)
        a.label("AT_SLOW")
        vMX = SS[1]
        a(f"""
        s_mul_i32 s40, s80, {KV_HEAD}
        s_add_u32 s40, s40, {WS_KV}
        s_mov_b32 s43, 0
        v_mov_b32 v{vMX}, 0xff800000
        s_mov_b32 exec_lo, 0
        v_mov_b32 v{Q[0]+4}, 0
        s_mov_b64 exec, -1
        """)
        for i in range(16):
            a(f"v_mov_b32 v{Oo+i}, 0")
        a.label("AT_SLOOP")
        sc = SS[0]
        a(f"""
        buffer_load_dwordx2 {vr(KF[0],2)}, v{vKG}, s[16:19], s40 offen sc1
        buffer_load_dwordx2 {vr(KF[0]+2,2)}, v{vKG}, s[16:19], s40 offen offset:512 sc1
        buffer_load_dwordx2 {vr(KF[0]+4,2)}, v{vKG}, s[16:19], s40 offen offset:1024 sc1
        s_mov_b64 exec, s[46:47]
        buffer_load_dwordx4 {vr(VF[0],4)}, v{vVG}, s[16:19], s40 offen sc1
        buffer_load_dwordx4 {vr(VF[0]+4,4)}, v{vVG}, s[16:19], s40 offen offset:640 sc1
        s_mov_b64 exec, -1
        s_waitcnt vmcnt(0)
        """)
        qka(0, 0, 0)
        qkb(0, 0, 0)
        a("s_nop 15")
        rowmax(sc, vT, vT2, vMX)
        a(f"""
        v_sub_f32 v{vT2}, v{vMX}, v{vT}
        v_exp_f32 v{vT2}, v{vT2}                ; alpha
        v_mov_b32 v{vMX}, v{vT}
        """)
        for i in range(16):
            a(f"v_sub_f32 v{sc+i}, v{sc+i}, v{vT}")
        for i in range(16):
            a(f"v_exp_f32 v{sc+i}, v{sc+i}")
        for i in range(16):
            a(f"v_mul_f32 v{Oo+i}, v{vT2}, v{Oo+i}")
        for i in range(8):
            a(f"v_cvt_pk_bf16_f32 v{P+i}, v{sc+2*i}, v{sc+2*i+1}")
        a("s_nop 1")
        pv(0, 0, 0)
        pv(0, 1, 0)
        a(f"""
        s_add_u32 s40, s40, {KV_TILE}
        s_add_u32 s43, s43, 1
        s_nop 15
        s_cmp_lt_u32 s43, 64
        s_cbranch_scc1 AT_SLOOP
        s_branch AT_FIN
        """)
```

```python
from asmlib import *
from layout import *
import gemm
from gemm import G
import os
ABL = os.environ.get('ABL', '')

def gen_ffn2(a):
    import mega as M
    g = G(2, 72, 12, 3, M.L_RED, M.L_FPROG, "FF")
    a(f"s_setprio {os.environ.get('FPRIO', '0')}")
    a("s_mov_b32 s50, s3")
    gemm.setup(a, g, 50)
    M.srd(a, 60, 30, D * 2)
    M.srd(a, 64, 72, S * D * 2)
    a(f"""
    s_lshl_b32 s53, s80, 11               ; 2r*1024
    s_mul_i32 s54, s81, 3
    s_lshl_b32 s36, s81, 1
    s_add_u32 s36, s36, 4
    s_cmp_lt_u32 s81, 4
    s_cselect_b32 s54, s54, s36
    s_mul_i32 s70, s50, {27*65536}
    s_add_u32 s70, s70, s53
    s_add_u32 s70, s70, {WS_H}
    s_mul_i32 s71, s50, {27*20}
    s_add_u32 s71, s71, s54
    s_lshl_b32 s71, s71, 10
    s_add_u32 s71, s71, {WS_W2F}
    """)
    T = 60
    def gate(n, first, sleep):
        L = M.uid("GATE")
        a(f"""
        s_cmp_lg_u32 s3, 0
        s_cbranch_scc1 {L}_W
        """)
        if first:
            M.shard_regs(a, T, T + 1, CN_P, 2)
            a(f"""
            s_lshr_b32 s36, s80, 1
            s_lshl_b32 s36, s36, 8
            s_add_u32 s36, s36, {CN_H}
            s_mov_b32 exec_lo, 0
            v_mov_b32 v{T}, s36
            v_mov_b32 v{T+1}, 14
            s_mov_b64 exec, -1
            """)
        else:
            a(f"""
            s_lshr_b32 s36, s80, 2
            s_lshl_b32 s36, s36, 8
            s_add_u32 s36, s36, {CN_O}
            v_mov_b32 v{T}, s36
            v_mov_b32 v{T+1}, 32
            """)
        M.poll(a, T, T + 1, T + 2, sleep)
        M.lds_add(a, M.L_REL, T)
        a(f"s_branch {L}_G")
        a.label(L + "_W")
        M.lds_wait(a, M.L_REL, n, T, 2)
        a.label(L + "_G")
    gate(1, True, 16)
    if 'g' not in ABL: a.ts_mark(5)
    a(f"""
    s_cmp_lt_u32 s81, 4
    s_cbranch_scc0 FF2_NB2
    """)
    for NB in (3, 2):
        if NB == 2:
            a.label("FF2_NB2")
            g.nsets = 5; g.acc = 104
        setsz = 20 if NB == 3 else 16
        g.phase = 0
        a.vm_issued = 0
        kl = gemm.KLoop(a, g, NB, 27, 70, 71, 65536, 20 * 1024, aflag="sc1", setsz=setsz, bflag="sc1")
        kl.prefetch()
        kl.run()
        if 'g' not in ABL: a.ts_mark(6)
        a(f"""
        s_setprio 3
        v_and_b32 v{g.vT}, 31, v1
        v_lshlrev_b32 v{g.vA0}, 3, v{g.vT}
        v_lshrrev_b32 v{g.vT}, 5, v1
        v_lshl_add_u32 v{g.vA0}, v{g.vT}, 8, v{g.vA0}      ; hh*256 + m*8
        s_lshr_b32 s36, s50, 1
        s_mul_i32 s37, s36, {QBLK}
        s_xor_b32 s36, s36, 1
        s_mul_i32 s36, s36, {QBLK}
        v_add_u32 v{g.vA1}, s36, v{g.vA0}
        v_add_u32 v{g.vA0}, s37, v{g.vA0}
        s_mul_i32 s70, s80, {2*QBLK}
        s_mul_i32 s36, s50, {10*1024}
        s_add_u32 s70, s70, s36
        s_add_u32 s70, s70, {WS_O}
        s_mul_i32 s71, s50, {10*20}
        s_add_u32 s71, s71, s54
        s_lshl_b32 s71, s71, 10
        s_add_u32 s71, s71, {WS_WOF}
        """)
        gate(2, False, 4)
        a.vm_issued = 0
        kl = gemm.KLoop(a, g, NB, 10, 70, 71, 1024, 20 * 1024, aflag="sc1", setsz=setsz, bflag="sc1", planes=True, accumulate=True)
        kl.prefetch()
        kl.run()
        BI = g.sets
        vO = g.sets + 24
        a(f"""
        s_lshr_b32 s36, s50, 1
        s_and_b32 s37, s50, 1
        s_lshl_b32 s72, s54, 6
        s_lshl_b32 s38, s37, 5
        s_add_u32 s72, s72, s38
        s_lshl_b32 s56, s80, 1
        s_add_u32 s56, s56, s36
        s_mul_i32 s56, s56, {32*1280}
        s_add_u32 s56, s56, s72
        v_lshrrev_b32 v{vO+1}, 5, v1
        v_lshlrev_b32 v{vO+1}, 3, v{vO+1}    ; hh*8
        v_and_b32 v{vO}, 31, v1
        v_mul_u32_u24 v{vO}, 1280, v{vO}
        v_add_u32 v{vO}, v{vO}, v{vO+1}
        """)
        for nb in range(NB):
            gemm.bias_load(a, BI + 4 * nb, vO + 1, "s[60:63]", 72, nb)
            gemm.bias_load(a, BI + 12 + 4 * nb, vO, "s[8:11]", 56, nb)
        gemm.reduce(a, g, NB, 50)
        a("s_waitcnt vmcnt(0)")
        for nb in range(NB):
            oo = g.acc + 32 * nb
            gemm.add_bias(a, oo, BI + 4 * nb, oo + 8)
            gemm.add_bias(a, oo, BI + 12 + 4 * nb, oo + 8)
            gemm.pack8(a, oo, oo + 16)
            a(f"buffer_store_dwordx2 {vr(oo+16,2)}, v{vO}, s[64:67], s56 offen offset:{64*nb}")
            a(f"buffer_store_dwordx2 {vr(oo+18,2)}, v{vO}, s[64:67], s56 offen offset:{64*nb+16}")
        a.exit(0)
```

```python
import sys
from mega import gen_mega
def build(parts, path):
    hdr = open("parallel_sum__mha_block__dense_activation_gelu__prompt.s.ref").read().split("; Override launch")[0]
    s = hdr
    for p in parts:
        s += p[2] + "\n"
    s += '.amdgcn_target "amdgcn-amd-amdhsa--gfx950"\n.text\n.globl parallel_sum__mha_block__dense_activation_gelu__prompt_kernel\n'
    seen = set()
    for p in parts:
        if p[1] in seen: continue
        s += p[0]
        seen.add(p[1])
    s += '.section .rodata,"a"\n'
    seen = set()
    for p in parts:
        if p[1] in seen: continue
        seen.add(p[1])
        s += ".p2align 6\n" + p[1]
    import os
    fa = os.environ.get("FABL", "")
    if fa:
        i, j = s.index("K2_FFN:"), s.index("K2_END:")
        body = s[i:j].split("\n")
        out = []
        for l in body:
            if 'm' in fa and "v_mfma" in l: continue
            if 'l' in fa and "buffer_load_dwordx4" in l: continue
            if 'v' in fa and any(x in l for x in ("v_exp_f32", "v_rcp_f32", "v_mul_f32", "v_fma_f32", "v_add_f32")): continue
            out.append(l)
        s = s[:i] + "\n".join(out) + s[j:]
    lp = os.environ.get("LPRIO")
    if lp:
        fp = os.environ.get("FPRIO", "2")
        i, j = s.index("K2_FFN:"), s.index("K2_END:")
        body = s[i:j].split("\n")
        out = []
        inl = False
        for l in body:
            isl = "buffer_load_dwordx4" in l
            if isl and not inl:
                out.append(f"    s_setprio {lp}"); inl = True
            elif inl and not isl:
                out.append(f"    s_setprio {fp}"); inl = False
            out.append(l)
        s = s[:i] + "\n".join(out) + s[j:]
    open(path, "w").write(s)
if __name__ == "__main__":
    import asmlib
    if "--ts" in sys.argv:
        asmlib.Asm.TS = True
        sys.argv.remove("--ts")
    out = sys.argv[1] if len(sys.argv) > 1 else "out.s"
    build([gen_mega()], out)
```

```python
from asmlib import *
from layout import *
import gemm
from gemm import G
import os
ABL = os.environ.get('ABL', '')
NAME = "parallel_sum__mha_block__dense_activation_gelu__prompt_kernel"

SLOT = 32768
L_MEAN = 131072
L_RINV = L_MEAN + 512
L_MR = L_MEAN + 1024
L_CS = L_MEAN + 1536
LT = KV_TILE + 32
LCH = 8 * LT
L_DUMMY = 4 * LCH
L_RED = 85504
L_SYNC = L_RED + 4 * 18432
L_APROG, L_INV, L_PAIR, L_FPROG = L_SYNC, L_SYNC + 32, L_SYNC + 48, L_SYNC + 64
L_CNTQ, L_CNTH, L_CNTO, L_CNTP, L_REL = L_SYNC + 80, L_SYNC + 84, L_SYNC + 88, L_SYNC + 92, L_SYNC + 96
L_CNTF, L_RELA = L_SYNC + 100, L_SYNC + 104
LDS_TOTAL = L_SYNC + 256
NPIECE = 740
VMASK = "0x000fffff"
DBG = "s[76:79]"

def srd(a, d, base, nbytes):
    a(f"s_mov_b32 s{d}, s{base}")
    a(f"s_mov_b32 s{d+1}, s{base+1}")
    a(f"s_mov_b32 s{d+2}, {nbytes}")
    a(f"s_mov_b32 s{d+3}, 0x00020000")

def tr_pattern(a, vD, vlane, vtmp, hh_mul):
    a(f"""
    v_lshrrev_b32 v{vtmp}, 5, v{vlane}
    v_mul_u32_u24 v{vD}, {hh_mul}, v{vtmp}
    v_bfe_u32 v{vtmp}, v{vlane}, 2, 2
    v_lshl_add_u32 v{vD}, v{vtmp}, 6, v{vD}
    v_bfe_u32 v{vtmp}, v{vlane}, 4, 1
    v_lshl_add_u32 v{vD}, v{vtmp}, 5, v{vD}
    v_and_b32 v{vtmp}, 3, v{vlane}
    v_lshl_add_u32 v{vD}, v{vtmp}, 3, v{vD}
    """)

def bf16r(a, v):
    a(f"v_cvt_pk_bf16_f32 v{v}, v{v}, v{v}")
    a(f"v_and_b32 v{v}, 0xffff0000, v{v}")

_uid = [0]
def uid(p):
    _uid[0] += 1
    return f"{p}{_uid[0]}"

def publish(a, lcnt, nwaves, sword, t):
    L = uid("PUB")
    a(f"""
    v_mov_b32 v{t}, {lcnt}
    v_mov_b32 v{t+1}, 1
    v_mov_b32 v{t+3}, s{sword}
    s_waitcnt vmcnt(0)
    s_mov_b64 exec, 1
    ds_add_rtn_u32 v{t+2}, v{t}, v{t+1}
    s_waitcnt lgkmcnt(0)
    v_readfirstlane_b32 s36, v{t+2}
    s_cmp_lg_u32 s36, {nwaves-1}
    s_cbranch_scc1 {L}
    buffer_atomic_add v{t+1}, v{t+3}, s[16:19], 0 offen sc1
    """)
    a.label(L)
    a("s_mov_b64 exec, -1")

def poll(a, vaddr, vexp, t, sleep=4, srd="s[16:19]"):
    L = uid("POLL")
    a.label(L)
    a(f"""
    buffer_load_dword v{t}, v{vaddr}, {srd}, 0 offen sc1
    s_waitcnt vmcnt(0)
    v_cmp_gt_u32 vcc, v{vexp}, v{t}
    s_nop 1
    s_cbranch_vccz {L}_OK
    s_add_u32 s101, s101, 1
    s_cmp_gt_u32 s101, 0x40000
    s_cbranch_scc1 K_END
    s_sleep {sleep}
    s_branch {L}
    """)
    a.label(L + "_OK")

def lds_add(a, addr, t):
    a(f"""
    v_mov_b32 v{t}, {addr}
    v_mov_b32 v{t+1}, 1
    s_mov_b64 exec, 1
    ds_add_u32 v{t}, v{t+1}
    s_mov_b64 exec, -1
    """)

def lds_wait(a, addr, target, t, sleep=1):
    L = uid("LW")
    a(f"v_mov_b32 v{t}, {addr}")
    a.label(L)
    a(f"""
    ds_read_b32 v{t+1}, v{t}
    s_waitcnt lgkmcnt(0)
    v_cmp_gt_u32 vcc, {target}, v{t+1}
    s_nop 1
    s_cbranch_vccz {L}_OK
    s_add_u32 s101, s101, 1
    s_cmp_gt_u32 s101, 0x40000
    s_cbranch_scc1 K_END
    s_sleep {sleep}
    s_branch {L}
    """)
    a.label(L + "_OK")

def lds_sync(a, addr, target, t):
    lds_add(a, addr, t)
    lds_wait(a, addr, target, t)

def kv_acquire_begin(a, t):
    L = uid("KVA")
    a(f"""
    s_cmp_lg_u32 s3, 2
    s_cbranch_scc1 {L}
    """)
    lds_wait(a, L_RELA, 1, t, 2)
    a("buffer_inv sc1")
    a.label(L)

def kv_acquire_end(a, t):
    L = uid("KVE")
    a(f"""
    v_mov_b32 v{t}, {L_INV}
    v_mov_b32 v{t+1}, 1000
    s_cmp_lg_u32 s3, 2
    s_cbranch_scc1 {L}
    s_waitcnt vmcnt(0)
    ds_write_b32 v{t}, v{t+1}
    """)
    a.label(L)

def init_seen(a, t):
    a(f"""
    v_and_b32 v{t}, 15, v1
    v_lshlrev_b32 v{t}, 2, v{t}
    v_add_u32 v{t}, {DB_ST*4}, v{t}
    v_mov_b32 v{t+1}, 1
    """)
    poll(a, t, t + 1, t + 2, 16, DBG)

def shard_regs(a, va, ve, base, expect):
    a(f"""
    v_and_b32 v{va}, 15, v1
    v_lshlrev_b32 v{va}, 8, v{va}
    v_add_u32 v{va}, {base}, v{va}
    v_mov_b32 v{ve}, {expect}
    """)

def gen_prep(a):
    vG, vT, vL16, vPL, vTR, vD, vO = 2, 3, 4, 5, 6, 8, 56
    a(f"""
    s_mul_i32 s47, s32, 12
    s_add_u32 s47, s47, s3
    v_lshlrev_b32 v{vL16}, 4, v1
    v_bfe_u32 v{vT}, v1, 2, 2
    v_mul_u32_u24 v{vG}, 1280, v{vT}
    v_and_b32 v{vT}, 3, v1
    v_lshl_add_u32 v{vG}, v{vT}, 4, v{vG}
    v_lshrrev_b32 v{vT}, 4, v1
    v_lshl_add_u32 v{vG}, v{vT}, 6, v{vG}
    """)
    tr_pattern(a, vTR, 1, vT, 1024)
    a(f"""
    s_lshl_b32 s36, s3, 12
    v_add_u32 v{vTR}, s36, v{vTR}
    v_add_u32 v{vPL}, s36, v{vL16}
    """)
    def issue(r, off):
        a(f"""
        s_add_u32 s40, s47, {off}
        s_min_u32 s40, s40, {NPIECE-1}
        s_cmp_lt_u32 s40, 540
        s_cselect_b32 s36, 0, 540
        s_cselect_b32 s20, s28, s24
        s_cselect_b32 s21, s29, s25
        s_mov_b32 s22, {640*640*2}
        s_cselect_b32 s22, {1728*640*2}, s22
        s_mov_b32 s23, 0x00020000
        s_sub_u32 s36, s40, s36
        s_mul_i32 s37, s36, {(1<<20)//5+1}
        s_lshr_b32 s37, s37, 20              ; kstep
        s_mul_i32 s38, s37, 5
        s_sub_u32 s36, s36, s38              ; cb
        s_mul_i32 s37, s37, {16*1280}
        s_lshl_b32 s36, s36, 8
        s_add_u32 s37, s37, s36
        s_lshl_b32 s{42+r}, s40, 12
        s_add_u32 s{42+r}, s{42+r}, {WS_W2F}
        """)
        for j in range(4):
            a(f"buffer_load_dwordx4 {vr(vD+16*r+4*j,4)}, v{vG}, s[20:23], s37 offen")
            a(f"s_add_u32 s37, s37, {4*1280}")
    def finish(r, cnt):
        a(f"s_waitcnt vmcnt({cnt})")
        for j in range(4):
            a(f"ds_write_b128 v{vPL}, {vr(vD+16*r+4*j,4)} offset:{j*1024}")
        a("s_waitcnt lgkmcnt(0)")
        for nb in range(4):
            for q in range(2):
                a(f"ds_read_b64_tr_b16 {vr(vO+16*r+4*nb+2*q,2)}, v{vTR} offset:{q*2048+nb*256}")
        for nb in range(4):
            a(f"s_waitcnt lgkmcnt({6-2*nb})")
            a(f"buffer_store_dwordx4 {vr(vO+16*r+4*nb,4)}, v{vL16}, s[16:19], s{42+r} offen offset:{nb*1024} sc1")
    a(f"""
    s_cmp_eq_u32 s33, 15
    s_cbranch_scc1 PREP3
    """)
    issue(0, 576)
    finish(0, 0)
    a("s_branch PREP_DONE")
    a.label("PREP3")
    for r in range(3): issue(r, 192 * r)
    for r in range(3): finish(r, 8)
    a.label("PREP_DONE")
    a("s_barrier")
    a(f"s_lshl_b32 s37, s32, 8")
    a(f"s_add_u32 s37, s37, {CN_P}")
    publish(a, L_CNTP, 12, 37, 104)

def gen_stats(a):
    XR = 16
    a(f"""
    s_cmp_ge_u32 s3, 8
    s_cbranch_scc1 ST_ZERO
    v_lshrrev_b32 v2, 3, v1
    v_and_b32 v3, 7, v1
    v_mul_u32_u24 v4, 1280, v2
    v_lshl_add_u32 v4, v3, 4, v4
    s_lshl_b32 s36, s32, 3
    s_add_u32 s36, s36, s3
    s_mul_i32 s36, s36, {16*1280}
    s_add_u32 s37, s36, {8*1280}
    """)
    a.vm_issued = 0
    tk = {}
    for g in range(2):
        for i in range(10):
            tk[(g, i)] = a.vm(f"buffer_load_dwordx4 {vr(XR+40*g+4*i,4)}, v4, s[8:11], s{36+g} offen offset:{128*i}")
    vS, vQ = 8, 10
    for i in range(4):
        a(f"v_mov_b32 v{vS+i}, 0")
    a("s_mov_b32 s38, 0x3f803f80")
    for g in range(2):
        for i in range(10):
            a.wait_vm(tk[(g, i)])
            for e in range(4):
                r = XR + 40 * g + 4 * i + e
                a(f"v_dot2c_f32_bf16 v{vS+g}, s38, v{r}")
                a(f"v_dot2c_f32_bf16 v{vQ+g}, v{r}, v{r}")
    a("s_nop 3")
    dpp = "row_mask:0xf bank_mask:0xf"
    for pat in ("quad_perm:[1,0,3,2]", "quad_perm:[2,3,0,1]", "row_half_mirror"):
        for i in range(4):
            a(f"v_add_f32_dpp v{vS+i}, v{vS+i}, v{vS+i} {pat} {dpp}")
    a(f"s_mov_b32 s36, {f32(1.0/640)}")
    for j in range(2):
        a(f"v_mul_f32 v{vS+j}, s36, v{vS+j}")
        a(f"v_mul_f32 v{vQ+j}, s36, v{vQ+j}")
    for j in range(2):
        a(f"v_fma_f32 v{vQ+j}, -v{vS+j}, v{vS+j}, v{vQ+j}")
    for j in range(2):
        a(f"v_max_f32 v{vQ+j}, 0, v{vQ+j}")
    for j in range(2):
        bf16r(a, vS + j); bf16r(a, vQ + j)
    for j in range(2):
        a(f"v_add_f32 v{vQ+j}, {f32(1e-5)}, v{vQ+j}")
    for j in range(2):
        bf16r(a, vQ + j)
    for j in range(2):
        a(f"v_sqrt_f32 v{vQ+j}, v{vQ+j}")
    a("s_nop 0")
    for j in range(2):
        bf16r(a, vQ + j)
    for j in range(2):
        a(f"v_rcp_f32 v{vQ+j}, v{vQ+j}")
    a(f"""
    s_mul_i32 s36, s32, 1536
    s_lshl_b32 s37, s3, 6
    s_add_u32 s36, s36, s37
    s_add_u32 s36, s36, {WS_STAT}
    v_lshlrev_b32 v2, 2, v2
    v_cmp_eq_u32 vcc, 0, v3
    """)
    for j in range(2):
        a(f"v_mul_f32 v{12+j}, v{vS+j}, v{vQ+j}")
    a("s_and_saveexec_b64 s[40:41], vcc")
    for j in range(2):
        a(f"buffer_store_dword v{vS+j}, v2, s[16:19], s36 offen offset:{32*j} sc1")
        a(f"buffer_store_dword v{vQ+j}, v2, s[16:19], s36 offen offset:{512+32*j} sc1")
        a(f"buffer_store_dword v{12+j}, v2, s[16:19], s36 offen offset:{1024+32*j} sc1")
    a(f"""
    s_mov_b64 exec, s[40:41]
    s_branch ST_BAR
    """)
    a.label("ST_ZERO")
    a(f"""
    s_sub_u32 s36, s3, 8
    s_lshl_b32 s36, s36, 12
    s_lshl_b32 s37, s32, 8
    s_add_u32 s36, s36, s37
    s_add_u32 s36, s36, {WS_CNT}
    v_mov_b32 v2, 0
    s_mov_b64 exec, 1
    buffer_store_dword v2, v2, s[16:19], s36 offen sc1
    s_mov_b64 exec, -1
    """)
    a.label("ST_BAR")
    a("s_waitcnt vmcnt(0)")
    a(f"""
    s_waitcnt lgkmcnt(0)
    s_barrier
    s_cmp_lg_u32 s3, 0
    s_cbranch_scc1 ST_DONE
    s_lshl_b32 s36, s32, 2
    v_mov_b32 v2, s36
    v_mov_b32 v3, 1
    s_mov_b64 exec, 1
    buffer_store_dword v3, v2, {DBG}, 0 offen offset:{DB_ST*4} sc1
    s_mov_b64 exec, -1
    """)
    init_seen(a, 2)
    a.label("ST_DONE")
    a.ts_mark(1)

from mega_attn import Attn
from mega_ffn import gen_ffn2

def gen_mega():
    a = Asm()
    a.raw(".p2align 8")
    a.raw(f".type {NAME},@function")
    a.label(NAME)
    a(f"""
    s_cmp_ge_u32 s2, 256
    s_cbranch_scc1 K_END
    """)
    a.ts_start()
    a(f"""
    s_load_dwordx4 s[4:7], s[0:1], 0       ; x, wqkv
    s_load_dwordx4 s[68:71], s[0:1], 72
    s_load_dwordx2 s[24:25], s[0:1], 16    ; wo
    s_load_dwordx4 s[52:55], s[0:1], 32    ; w1, b1
    s_load_dwordx4 s[28:31], s[0:1], 48    ; w2, b2
    s_load_dwordx2 s[72:73], s[0:1], 64    ; out
    s_mov_b32 s101, 0
    v_lshrrev_b32 v1, 6, v0
    s_and_b32 s34, s2, 7                 ; xcd
    v_readfirstlane_b32 s3, v1           ; wave
    v_and_b32 v1, 63, v0                 ; lane
    s_lshr_b32 s35, s2, 3                ; idx
    s_and_b32 s32, s34, 3
    s_lshl_b32 s32, s32, 2
    s_and_b32 s36, s35, 3
    s_add_u32 s32, s32, s36              ; mt
    s_lshr_b32 s33, s35, 2
    s_lshr_b32 s36, s34, 2
    s_sub_u32 s33, s33, s36
    s_and_b32 s33, s33, 7
    s_lshl_b32 s36, s36, 3
    s_add_u32 s33, s33, s36
    s_lshl_b32 s80, s34, 2
    s_lshr_b32 s36, s35, 3
    s_add_u32 s80, s80, s36
    s_and_b32 s81, s35, 7
    s_lshl_b32 s82, s32, 8
    s_add_u32 s82, s82, {CN_Q}
    v_lshlrev_b32 v2, 2, v1
    v_add_u32 v2, {L_SYNC}, v2
    v_mov_b32 v3, 0
    s_cmp_lg_u32 s3, 0
    s_cbranch_scc1 K_NOZ
    ds_write_b32 v2, v3
    """)
    a.label("K_NOZ")
    a("s_waitcnt lgkmcnt(0)")
    srd(a, 8, 4, S * D * 2)
    srd(a, 12, 6, D * 3 * D * 2)
    srd(a, 16, 70, WS_END)
    srd(a, 76, 68, 256)
    a(f"""
    s_cmp_eq_u32 s33, 15
    s_cbranch_scc1 K_STATS
    s_cmp_lt_u32 s3, 4
    s_cbranch_scc1 K_MFMA
    """)
    at = Attn(a)
    vXG = [140, 141, 152, 153]; vWG = 142
    vT, vT2, vT3 = 143, 144, 145
    vWM, vXM, vWD = 146, 147, 148
    DW = int(os.environ.get('DW', '3'))
    a(f"""
    s_sub_u32 s34, s3, 4                  ; hw 0..7
    s_cmp_ge_u32 s34, 4
    s_cbranch_scc1 H_WARM
    v_lshrrev_b32 v{vT}, 3, v1
    v_and_b32 v{vT2}, 7, v1
    v_lshrrev_b32 v{vT3}, 4, v1
    v_xor_b32 v{vT2}, v{vT2}, v{vT3}
    v_mul_u32_u24 v{vXG[0]}, 1280, v{vT}
    s_lshl_b32 s36, s32, 2
    s_add_u32 s36, s36, s34
    s_mul_i32 s36, s36, {32*1280}
    v_add_u32 v{vXG[0]}, s36, v{vXG[0]}
    v_add_u32 v{vXG[1]}, {8*1280}, v{vXG[0]}
    v_lshl_add_u32 v{vXG[0]}, v{vT2}, 4, v{vXG[0]}
    v_xor_b32 v{vT2}, 4, v{vT2}
    v_lshl_add_u32 v{vXG[1]}, v{vT2}, 4, v{vXG[1]}
    v_add_u32 v{vXG[2]}, {16*1280}, v{vXG[0]}
    v_add_u32 v{vXG[3]}, {16*1280}, v{vXG[1]}
    s_lshl_b32 s44, s34, 12
    """)
    def wsetup(stride):
        a(f"""
        v_bfe_u32 v{vT}, v1, 2, 2
        v_mul_u32_u24 v{vWG}, {stride}, v{vT}
        v_and_b32 v{vT}, 3, v1
        v_lshl_add_u32 v{vWG}, v{vT}, 4, v{vWG}
        v_lshrrev_b32 v{vT}, 4, v1
        v_lshl_add_u32 v{vWG}, v{vT}, 6, v{vWG}
        s_mul_i32 s46, s34, {16*stride}
        s_lshl_b32 s36, s33, 8
        s_add_u32 s46, s46, s36
        s_mov_b32 s45, 0
        """)
    toks = {}
    a.vm_issued = 0
    def loads(st):
        slot = st % 4
        stride = 3840 if st < 10 else 3456
        if st == 0: wsetup(3840)
        if st == 10:
            srd(a, 12, 52, D * F * 2)
            wsetup(3456)
        for j in range(4):
            a(f"s_add_u32 m0, s44, {slot*SLOT + j*1024}")
            a("s_nop 0")
            a.vm(f"buffer_load_dwordx4 v{vXG[j]}, s[8:11], s45 offen lds")
            a(f"s_add_u32 m0, s44, {slot*SLOT + 16384 + j*1024}")
            a("s_nop 0")
            toks[st] = a.vm(f"buffer_load_dwordx4 v{vWG}, s[12:15], s46 offen lds")
            a(f"s_add_u32 s46, s46, {4*stride if j < 3 else 52*stride}")
        a("s_add_u32 s45, s45, 128")
    for st in range(3):
        loads(st)
    for st in range(7):
        a.wait_vm(toks[st])
        a("s_barrier")
        loads(st + 3)
    a(f"""
    s_cmp_eq_u32 s33, 14
    s_cbranch_scc1 H_TYPEB
    """)
    save = a.vm_issued
    for st in range(7, 17):
        a.wait_vm(toks[st])
        a("s_barrier")
        loads(st + 3)
        if st == 9:
            a("s_barrier")
    for st in range(17, 20):
        a.wait_vm(toks[st])
        a("s_barrier")
    a.label("H_TAIL")
    at.run()
    a.label("H_WARM")
    def warm_setup(g2):
        stride = 3456 if g2 else 3840
        if g2: srd(a, 12, 52, D * F * 2)
        a(f"""
        s_sub_u32 s35, s34, 4
        s_and_b32 s36, s32, 3
        s_lshl_b32 s36, s36, 2
        s_lshl_b32 s37, s35, 4
        s_add_u32 s36, s36, s37
        s_mul_i32 s83, s36, {stride}
        s_lshl_b32 s37, s33, 8
        s_add_u32 s83, s83, s37                  ; W offset
        v_lshrrev_b32 v{vT}, 4, v1
        v_mul_u32_u24 v{vT}, {stride}, v{vT}
        v_and_b32 v{vT2}, 15, v1
        v_lshl_add_u32 v{vWM}, v{vT2}, 4, v{vT}
        """)
        if not g2:
            a(f"""
            s_add_u32 s83, s83, {3*64*stride}
            s_and_b32 s37, s33, 7
            s_lshl_b32 s37, s37, 1
            s_add_u32 s37, s37, s35
            s_lshl_b32 s37, s37, 3
            s_lshl_b32 s38, s32, 7
            s_add_u32 s37, s37, s38
            s_mul_i32 s84, s37, 1280
            s_cmp_lt_u32 s35, 2
            s_cselect_b32 s84, s84, 0x40000000
            v_lshrrev_b32 v{vT2}, 3, v1
            v_mul_u32_u24 v{vT2}, 1280, v{vT2}
            v_and_b32 v{vT3}, 7, v1
            v_lshl_add_u32 v{vXM}, v{vT3}, 4, v{vT2}
            """)
    def warm(st):
        if 'w' in ABL or st >= 20: return
        if st == 3: warm_setup(False)
        if st == 10: warm_setup(True)
        a(f"buffer_load_dwordx4 {vr(vWD,4)}, v{vWM}, s[12:15], s83 offen")
        a(f"s_add_u32 s83, s83, {64*(3840 if st < 10 else 3456)}")
        if st < 10:
            a(f"buffer_load_dwordx4 {vr(vWD,4)}, v{vXM}, s[8:11], s84 offen offset:{128*st}")
    for w in range(3, 3 + DW): warm(w)
    WPS = int(os.environ.get('WPS', '3'))
    nxt = 3 + DW
    for st in range(10):
        a("s_barrier")
        for _ in range(WPS):
            warm(nxt); nxt += 1
    a(f"""
    s_barrier
    s_cmp_eq_u32 s33, 14
    s_cbranch_scc1 K_PREP
    """)
    for st in range(10, 20):
        a("s_barrier")
        for _ in range(WPS):
            warm(nxt); nxt += 1
    a("s_branch H_TAIL")
    a.label("H_TYPEB")
    a.vm_issued = save
    for st in range(7, 10):
        a.wait_vm(toks[st])
        a("s_barrier")
    a("s_barrier")
    a.label("K_PREP")
    gen_prep(a)
    a(f"""
    s_cmp_ge_u32 s3, 4
    s_cbranch_scc1 H_TAIL
    """)
    a("s_branch M_FFN2")
    a.label("K_STATS")
    gen_stats(a)
    a("s_branch K_PREP")

    a.label("K_MFMA")
    ACC = 64; FR = 32
    vXA = [[2, 3, 4, 5], [160, 161, 162, 163]]
    vWA = [[6, 11], [164, 165]]
    vM, vHH, vT, vT2 = 7, 8, 9, 10
    vEA = 12; vSEL = 24; vCSA = 28; EP = 128
    a(f"""
    s_lshr_b32 s34, s3, 1                ; wm
    s_and_b32 s35, s3, 1                 ; wn
    s_xor_b32 s43, s34, 1
    v_and_b32 v{vM}, 31, v1
    v_lshrrev_b32 v{vHH}, 5, v1
    v_bfe_u32 v{vT}, v{vM}, 1, 3
    v_xor_b32 v{vT}, v{vT}, v{vHH}
    v_lshlrev_b32 v{vT}, 4, v{vT}
    v_lshl_add_u32 v{vT}, v{vM}, 7, v{vT}
    s_lshl_b32 s36, s34, 13
    v_add_u32 v{vXA[0][0]}, s36, v{vT}
    v_xor_b32 v{vXA[0][1]}, 32, v{vXA[0][0]}
    v_xor_b32 v{vXA[0][2]}, 64, v{vXA[0][0]}
    v_xor_b32 v{vXA[0][3]}, 0x60, v{vXA[0][0]}
    v_and_b32 v{vT}, 15, v1
    v_bfe_u32 v{vT2}, v1, 4, 1
    v_cmp_eq_u32 vcc, v{vT}, v{vT2}
    v_mov_b32 v{vT}, 0x3f803f80
    s_nop 1
    v_cndmask_b32 v{vSEL}, 0, v{vT}, vcc
    v_cndmask_b32 v{vSEL+1}, 0, v{vT}, vcc
    v_cndmask_b32 v{vSEL+2}, 0, v{vT}, vcc
    v_cndmask_b32 v{vSEL+3}, 0, v{vT}, vcc
    """)
    tr_pattern(a, vWA[0][0], 1, vT, 2048)
    a(f"""
    s_lshl_b32 s36, s35, 9
    s_add_u32 s36, s36, 16384
    s_lshl_b32 s37, s34, 8
    s_add_u32 s36, s36, s37
    v_add_u32 v{vWA[0][0]}, s36, v{vWA[0][0]}
    v_xor_b32 v{vWA[0][1]}, 0x100, v{vWA[0][0]}
    """)
    for i in range(4):
        a(f"v_add_u32 v{vXA[1][i]}, {2*SLOT}, v{vXA[0][i]}")
    for i in range(2):
        a(f"v_add_u32 v{vWA[1][i]}, {2*SLOT}, v{vWA[0][i]}")
    vW1, vW2, vW3, vWD = 144, 145, 146, 148
    def warm_setup():
        a(f"""
        v_lshrrev_b32 v{vT}, 4, v1
        v_and_b32 v{vT2}, 15, v1
        v_lshlrev_b32 v{vT2}, 4, v{vT2}
        v_mul_u32_u24 v{vW1}, 3840, v{vT}
        v_add_u32 v{vW1}, v{vW1}, v{vT2}
        v_mul_u32_u24 v{vW2}, 3456, v{vT}
        v_add_u32 v{vW2}, v{vW2}, v{vT2}
        v_mul_u32_u24 v{vW3}, 1280, v{vT}
        v_add_u32 v{vW3}, v{vW3}, v{vT2}
        s_and_b32 s36, s32, 3
        s_lshl_b32 s36, s36, 2
        s_lshl_b32 s37, s3, 4
        s_add_u32 s36, s36, s37
        s_lshl_b32 s38, s33, 8
        s_mul_i32 s83, s36, 3840
        s_add_u32 s83, s83, s38
        s_add_u32 s83, s83, {3*64*3840}
        s_mul_i32 s84, s36, 3456
        s_add_u32 s84, s84, s38
        s_and_b32 s85, s33, 7
        s_lshl_b32 s85, s85, 4
        s_lshl_b32 s36, s3, 2
        s_add_u32 s85, s85, s36
        s_lshl_b32 s36, s32, 7
        s_add_u32 s85, s85, s36
        s_mul_i32 s85, s85, 1280
        """)
        srd(a, 20, 52, D * F * 2)
    def warm_a():
        if 'w' in ABL: return
        for st in range(3, 10):
            if st % 2 == 1:
                a(f"buffer_load_dwordx4 {vr(vWD,4)}, v{vW3}, s[8:11], s85 offen offset:{(st//2)*256}")
            a(f"buffer_load_dwordx4 {vr(vWD,4)}, v{vW1}, s[12:15], s83 offen")
            a(f"s_add_u32 s83, s83, {64*3840}")
    def warm_b():
        if 'w' in ABL: return
        a(f"buffer_load_dwordx4 {vr(vWD,4)}, v{vW2}, s[20:23], s84 offen")
        a(f"s_add_u32 s84, s84, {64*3456}")
    SF = 128
    def st_flag():
        L = uid("SF")
        a(f"""
        v_and_b32 v{SF}, 15, v1
        v_lshlrev_b32 v{SF}, 2, v{SF}
        v_add_u32 v{SF}, {DB_ST*4}, v{SF}
        v_mov_b32 v{SF+1}, 1
        s_cmp_lg_u32 s3, 3
        s_cbranch_scc1 {L}
        buffer_load_dword v{SF+2}, v{SF}, {DBG}, 0 offen sc1
        """)
        a.label(L)
    def st_load():
        L = uid("SL")
        a(f"""
        s_cmp_lg_u32 s3, 3
        s_cbranch_scc1 {L}
        s_waitcnt vmcnt(0)
        v_cmp_gt_u32 vcc, v{SF+1}, v{SF+2}
        s_nop 1
        s_cbranch_vccz {L}_GO
        """)
        poll(a, SF, SF + 1, SF + 2, 4, DBG)
        a.label(L + "_GO")
        a(f"""
        s_mul_i32 s36, s32, 1536
        s_add_u32 s36, s36, {WS_STAT}
        v_lshlrev_b32 v{SF}, 3, v1
        buffer_load_dwordx2 {vr(SF+2,2)}, v{SF}, s[16:19], s36 offen sc1
        buffer_load_dwordx2 {vr(SF+4,2)}, v{SF}, s[16:19], s36 offen offset:512 sc1
        buffer_load_dwordx2 {vr(SF+6,2)}, v{SF}, s[16:19], s36 offen offset:1024 sc1
        v_add_u32 v{SF}, {L_MEAN}, v{SF}
        """)
        a.label(L)
    def st_store():
        L = uid("SS")
        a(f"""
        s_cmp_lg_u32 s3, 3
        s_cbranch_scc1 {L}
        s_waitcnt vmcnt(0)
        ds_write_b64 v{SF}, {vr(SF+2,2)}
        ds_write_b64 v{SF}, {vr(SF+4,2)} offset:512
        ds_write_b64 v{SF}, {vr(SF+6,2)} offset:1024
        """)
        a.label(L)
    g1hooks = {}
    g1hooks[25] = st_flag; g1hooks[32] = st_load; g1hooks['end'] = st_store
    a(f"""
    s_cmp_ge_u32 s33, 10
    s_cbranch_scc1 M_V
    """)
    snb = [34, 43]
    def read_ops(t, st0):
        st, s = st0 + t // 4, t % 4
        slot = st % 4
        hs, so = slot // 2, (slot % 2) * SLOT
        f = FR + 16 * (t % 2)
        ops = []
        for r in range(2):
            ops.append(f"ds_read_b64_tr_b16 {vr(f+8+2*r,2)}, v{vWA[hs][0]} offset:{so+s*4096+r*1024}")
        ops.append(f"ds_read_b128 {vr(f,4)}, v{vXA[hs][s]} offset:{so}")
        ops.append(f"ds_read_b128 {vr(f+4,4)}, v{vXA[hs][s]} offset:{so+4096}")
        for r in range(2):
            ops.append(f"ds_read_b64_tr_b16 {vr(f+12+2*r,2)}, v{vWA[hs][1]} offset:{so+s*4096+r*1024}")
        return ops
    def mainloop(vtype, st0, hooks={}, last=False):
        a("s_barrier")
        if 'g' in ABL and st0 == 0: a.ts_mark(3)
        for o in read_ops(0, st0): a(o)
        for t in range(40):
            a("s_waitcnt lgkmcnt(0)")
            if 'g' in ABL and st0 == 0 and t == 12: a.ts_mark(4)
            if 'g' in ABL and st0 == 0 and t == 24: a.ts_mark(5)
            if 'g' in ABL and st0 == 0 and t == 39: a.ts_mark(6)
            if t in hooks: hooks[t]()
            rops = []
            if t + 1 < 40:
                if (t + 1) % 4 == 0:
                    a("s_barrier")
                rops = read_ops(t + 1, st0)
            f = FR + 16 * (t % 2)
            mf = []
            c = vr(vCSA, 4) if t > 0 else "0"
            order = [(0, 0), (0, 1), (1, 0), (1, 1)] if not vtype else [(0, 0), (1, 0), (0, 1), (1, 1)]
            for i, j in order:
                d = ACC + 16 * (2 * i + j)
                cc = vr(d, 16) if t > 0 else "0"
                if not vtype:
                    mf.append(f"v_mfma_f32_32x32x16_bf16 {vr(d,16)}, {vr(f+8+4*i,4)}, {vr(f+4*j,4)}, {cc}")
                else:
                    mf.append(f"v_mfma_f32_32x32x16_bf16 {vr(d,16)}, {vr(f+4*i,4)}, {vr(f+8+4*j,4)}, {cc}")
            mf.insert(3, f"v_mfma_f32_16x16x32_bf16 {vr(vCSA,4)}, {vr(vSEL,4)}, {vr(f+8,4)}, {c}")
            for k, m in enumerate(mf):
                a(m)
                for o in rops[2*k:2*k+2]: a(o)
        if 'end' in hooks: hooks['end']()
        a(f"""
        s_lshl_b32 s36, s35, 8
        s_lshl_b32 s37, s34, 7
        s_add_u32 s36, s36, s37
        s_add_u32 s36, s36, {L_CS}
        v_lshl_add_u32 v{vT}, v1, 2, s36
        s_mov_b64 exec, 0xffff
        s_nop 3
        ds_write_b32 v{vT}, v{vCSA}
        ds_write_b32 v{vT}, v{vCSA+1} offset:64
        s_mov_b64 exec, -1
        s_waitcnt vmcnt(0) lgkmcnt(0)
        """)
        if not last:
            a("s_barrier")
        else:
            lds_sync(a, L_CNTF, 4, 20)
    def ln_rows():
        a(f"""
        s_lshl_b32 s36, s34, 8
        s_add_u32 s36, s36, {L_MEAN}
        v_lshl_add_u32 v{vT}, v{vM}, 2, s36          ; (64wm+m)*4
        s_lshl_b32 s36, s35, 8
        s_lshl_b32 s37, s34, 7
        s_add_u32 s36, s36, s37
        s_add_u32 s36, s36, {L_CS}
        v_lshl_add_u32 v{vT2}, v{vHH}, 4, s36        ; (64wn+32nb0+4hh)*4
        v_xor_b32 v{vCSA}, 0x80, v{vT2}              ; slot 1
        ds_read_b32 v20, v{vT}
        ds_read_b32 v21, v{vT} offset:128
        ds_read_b32 v22, v{vT} offset:512
        ds_read_b32 v23, v{vT} offset:640
        """)
        for i in range(2):
            for aa in range(4):
                a(f"ds_read_b128 {vr(EP+16*i+4*aa,4)}, v{vT2 if i == 0 else vCSA} offset:{32*aa}")
    a(f"""
    s_cmp_ge_u32 s33, 5
    s_cselect_b32 s38, 5, 0
    s_sub_u32 s36, s33, s38
    s_lshl_b32 s36, s36, 5
    s_lshl_b32 s37, s35, 4
    s_add_u32 s36, s36, s37              ; ubase
    s_lshl_b32 s37, s32, 2
    s_lshl_b32 s38, s34, 1
    s_add_u32 s37, s37, s38
    s_mov_b32 s39, {QBLK}
    s_mov_b32 s40, {WS_Q}
    s_movk_i32 s41, 1280
    s_cmp_ge_u32 s33, 5
    s_cselect_b32 s39, {KV_TILE}, s39
    s_cselect_b32 s40, {WS_KV}, s40
    s_cselect_b32 s41, {KV_HEAD}, s41
    s_mul_i32 s44, s37, s39
    s_add_u32 s44, s44, s40
    s_add_u32 s45, s44, s39
    """)
    for i in range(2):
        a(f"""
        s_lshl_b32 s38, s{snb[i]}, 3
        s_add_u32 s38, s38, s36
        v_add_u32 v{vT2}, s38, v{vHH}
        """)
        for aa in range(4):
            e = vEA + i * 4 + aa
            a(f"""
            v_add_u32 v20, {2*aa}, v{vT2}           ; u
            v_mul_u32_u24 v21, 205, v20
            v_lshrrev_b32 v21, 10, v21              ; u/5
            v_mul_u32_u24 v22, 5, v21
            v_sub_u32 v20, v20, v22                 ; u%5
            v_mul_lo_u32 v{e}, v21, s41
            v_lshl_add_u32 v{e}, v20, 8, v{e}
            v_lshl_add_u32 v{e}, v{vM}, 3, v{e}
            """)
    mainloop(False, 0, g1hooks)
    a.ts_mark(1)
    ln_rows()
    a(f"""
    s_cmp_lt_u32 s33, 5
    s_cselect_b32 s36, {f32(QSCALE)}, 1.0
    s_waitcnt lgkmcnt(0)
    v_mul_f32 v22, s36, v22
    v_mul_f32 v23, s36, v23
    """)
    for mb in range(2):
        for i in range(2):
            for aa in range(4):
                d = ACC + 16 * (2 * i + mb) + 4 * aa
                for b in range(4):
                    a(f"v_fma_f32 v{d+b}, -v{20+mb}, v{EP+16*i+4*aa+b}, v{d+b}")
                for b in range(4):
                    a(f"v_mul_f32 v{d+b}, v{22+mb}, v{d+b}")
                a(f"v_cvt_pk_bf16_f32 v{d}, v{d}, v{d+1}")
                a(f"v_cvt_pk_bf16_f32 v{d+1}, v{d+2}, v{d+3}")
                a(f"buffer_store_dwordx2 {vr(d,2)}, v{vEA+i*4+aa}, s[16:19], s{44+mb} offen sc1")
    a("s_branch M_G2")
    a.label("M_V")
    a(f"""
    s_sub_u32 s36, s33, 10
    s_lshl_b32 s36, s36, 7
    s_lshl_b32 s37, s35, 6
    s_add_u32 s36, s36, s37
    s_lshl_b32 s37, s32, 2
    s_lshl_b32 s38, s34, 1
    s_add_u32 s37, s37, s38              ; tile0
    s_mul_i32 s44, s37, {KV_TILE}
    s_add_u32 s44, s44, {WS_KV+1280}
    s_mov_b32 s37, {KV_HEAD}
    """)
    for i in range(2):
        e = vEA + i
        a(f"""
        s_lshl_b32 s38, s{snb[i]}, 5
        s_add_u32 s38, s38, s36
        v_add_u32 v20, s38, v{vM}               ; c
        v_mul_u32_u24 v21, 3277, v20
        v_lshrrev_b32 v21, 16, v21              ; h = c/20
        v_mul_u32_u24 v22, 20, v21
        v_sub_u32 v20, v20, v22                 ; d
        v_mul_lo_u32 v{e}, v21, s37
        v_lshl_add_u32 v{e}, v20, 4, v{e}
        v_mul_u32_u24 v22, 320, v{vHH}
        v_add_u32 v{e}, v{e}, v22
        """)
    mainloop(True, 0, g1hooks)
    a.ts_mark(1)
    a(f"""
    s_lshl_b32 s36, s35, 8
    s_lshl_b32 s37, s34, 7
    s_add_u32 s36, s36, s37
    s_add_u32 s36, s36, {L_CS}
    v_lshl_add_u32 v{vT}, v{vM}, 2, s36          ; (64wn+32nb0+n)*4
    v_xor_b32 v{vCSA}, 0x80, v{vT}
    s_lshl_b32 s36, s34, 8
    s_add_u32 s36, s36, {L_RINV}
    v_lshl_add_u32 v{vT2}, v{vHH}, 4, s36        ; (64wm+4hh)*4
    ds_read_b32 v20, v{vT}
    ds_read_b32 v21, v{vCSA}
    """)
    for mb in range(2):
        for aa in range(4):
            a(f"ds_read_b128 {vr(EP+16*mb+4*aa,4)}, v{vT2} offset:{128*mb+32*aa}")
            a(f"ds_read_b128 {vr(FR+16*mb+4*aa,4)}, v{vT2} offset:{512+128*mb+32*aa}")
    a("s_waitcnt lgkmcnt(0)")
    for mb in range(2):
        for i in range(2):
            for j in range(2):
                d = ACC + 16 * (2 * mb + i) + 8 * j
                for e in range(8):
                    a(f"v_mul_f32 v{d+e}, v{EP+16*mb+8*j+e}, v{d+e}")
                for e in range(8):
                    a(f"v_fma_f32 v{d+e}, -v{FR+16*mb+8*j+e}, v{20+i}, v{d+e}")
                for e in range(4):
                    a(f"v_cvt_pk_bf16_f32 v{d+e}, v{d+2*e}, v{d+2*e+1}")
                a(f"buffer_store_dwordx4 {vr(d,4)}, v{vEA+i}, s[16:19], s44 offen offset:{mb*KV_TILE+j*640} sc1")
    a(f"""
    s_cmp_lg_u32 s33, 14
    s_cbranch_scc1 M_G2
    """)
    publish(a, L_CNTQ, 4, 82, 12)
    a("s_branch K_PREP")
    a.label("M_G2")
    a.ts_mark(2)
    BIAS = 12
    def hook_pub():
        publish(a, L_CNTQ, 4, 82, EP)
        srd(a, 56, 54, F * 2)
        a(f"v_lshlrev_b32 v{vT}, 3, v{vHH}")
        for i in range(2):
            a(f"""
            s_lshl_b32 s36, s33, 8
            s_lshl_b32 s37, s35, 7
            s_add_u32 s36, s36, s37
            s_lshl_b32 s37, s{snb[i]}, 6
            s_add_u32 s36, s36, s37
            """)
            for aa in range(4):
                r = (12 + 2 * aa) if i == 0 else (152 + 2 * aa)
                a(f"buffer_load_dwordx2 {vr(r,2)}, v{vT}, s[56:59], s36 offen offset:{16*aa}")
    def cq_issue():
        L = uid("CQI")
        shard_regs(a, EP + 4, EP + 5, CN_Q, 15)
        a(f"""
        s_cmp_lg_u32 s3, 2
        s_cbranch_scc1 {L}
        buffer_load_dword v{EP+6}, v{EP+4}, s[16:19], 0 offen sc1
        """)
        a.label(L)
    def cq_check():
        L = uid("CQC")
        a(f"""
        s_cmp_lg_u32 s3, 2
        s_cbranch_scc1 {L}
        s_waitcnt vmcnt(0)
        v_cmp_gt_u32 vcc, v{EP+5}, v{EP+6}
        s_nop 1
        s_cbranch_vccnz {L}
        """)
        lds_add(a, L_RELA, EP + 8)
        a("s_waitcnt lgkmcnt(0)")
        a.label(L)
    a("s_setprio 3")
    mainloop(False, 10, {int(os.environ.get('PUBT', '3')): hook_pub, 29: cq_issue, 35: cq_check}, last=True)
    a("s_waitcnt vmcnt(0)")
    if 'g' not in ABL: a.ts_mark(3)
    for k in range(8):
        a(f"v_mov_b32 v{FR+k}, v{152+k}")
    ln_rows()
    a(f"""
    s_lshl_b32 s36, s33, 2
    s_lshl_b32 s37, s35, 1
    s_add_u32 s36, s36, s37
    s_lshl_b32 s37, s32, 2
    s_lshl_b32 s38, s34, 1
    s_add_u32 s37, s37, s38
    s_lshl_b32 s37, s37, 10              ; (4mt+2wm)*1024
    s_add_u32 s37, s37, {WS_H}
    s_add_u32 s44, s36, s34
    s_lshl_b32 s44, s44, 17
    s_add_u32 s44, s44, s37              ; slot 0
    s_add_u32 s45, s36, s43
    s_lshl_b32 s45, s45, 17
    s_add_u32 s45, s45, s37              ; slot 1
    s_mov_b32 s39, {f32(gemm.C2)}
    v_mov_b32 v{vT}, {f32(gemm.C1)}
    v_lshlrev_b32 v{vT2}, 4, v1
    s_waitcnt lgkmcnt(0)
    """)
    TT = FR + 8
    for i in range(2):
        for half in range(2):
            for mb in range(2):
                d = ACC + 16 * (2 * i + mb) + 8 * half
                for e in range(8):
                    a(f"v_fma_f32 v{d+e}, -v{20+mb}, v{EP+16*i+8*half+e}, v{d+e}")
                vb = (12 if i == 0 else FR) + 4 * half
                for e in range(4):
                    a(f"v_lshlrev_b32 v{TT+2*e}, 16, v{vb+e}")
                    a(f"v_and_b32 v{TT+2*e+1}, 0xffff0000, v{vb+e}")
                for e in range(8):
                    a(f"v_fma_f32 v{d+e}, v{d+e}, v{22+mb}, v{TT+e}")
                gemm.gelu(a, d, TT, 39, vT)
                gemm.pack8(a, d, d)
                a(f"buffer_store_dwordx4 {vr(d,4)}, v{vT2}, s[16:19], s{44+i} offen offset:{1024*mb} sc1")
            a(f"s_add_u32 s{44+i}, s{44+i}, 65536")
    a(f"""
    s_lshl_b32 s37, s32, 8
    s_add_u32 s37, s37, {CN_H}
    """)
    publish(a, L_CNTH, 4, 37, 12)
    a.label("M_FFN2")

    if 'g' not in ABL: a.ts_mark(4)
    gen_ffn2(a)
    a.label("K_END")
    a("s_endpgm")
    return a.text(), kernel_desc(NAME, 168), f"; @launch grid=(256,1,1) block=(768,1,1) lds={LDS_TOTAL}"
```

```python
class Asm:
    def __init__(self):
        self.L = []
        self.vm_issued = 0
        self.lg_issued = 0
    def __call__(self, s):
        for line in s.strip("\n").split("\n"):
            line = line.strip()
            if line:
                self.L.append("    " + line)
    def label(self, l):
        self.L.append(l + ":")
    def raw(self, s):
        self.L.append(s)
    def c(self, s):
        self.L.append("    ; " + s)
    def vm(self, s):
        self(s)
        self.vm_issued += 1
        return self.vm_issued
    def wait_vm(self, tok):
        n = self.vm_issued - tok
        assert n >= 0
        self(f"s_waitcnt vmcnt({min(n, 63)})")
    def lg(self, s):
        self(s)
        self.lg_issued += 1
        return self.lg_issued
    def wait_lg(self, tok):
        n = self.lg_issued - tok
        assert n >= 0
        self(f"s_waitcnt lgkmcnt({min(n, 15)})")
    TS = False
    def ts_start(self):
        if Asm.TS:
            for i in range(1, 7): self(f"s_mov_b32 s{88+i}, 0")
            self.ts_mark(0)
    def ts_mark(self, i):
        if Asm.TS:
            self("s_memrealtime s[98:99]")
            self("s_waitcnt lgkmcnt(0)")
            self(f"s_mov_b32 s{88+i}, s98")
    def exit(self, kidx=0, swave="s3", srd="s[16:19]"):
        import os
        if Asm.TS and os.environ.get("TS2"):
            Asm._x = getattr(Asm, "_x", 0) + 1
            self(f"""
            s_waitcnt vmcnt(0) lgkmcnt(0)
            s_memrealtime s[98:99]
            s_and_b32 s100, s3, 11
            s_cmp_lg_u32 s100, 0
            s_cbranch_scc1 TS2X{Asm._x}
            s_lshl_b32 s100, s3, 3
            s_not_b32 s88, s88
            s_waitcnt lgkmcnt(0)
            s_mov_b64 exec, 1
            v_mov_b32 v8, s100
            """)
            for i, r in enumerate((88, 98, 89, 90, 91, 92, 93, 94)):
                self(f"v_mov_b32 v{i}, s{r}")
                self(f"buffer_atomic_umax v{i}, v8, s[76:79], 0 offen offset:{4*i} sc1")
            self.label(f"TS2X{Asm._x}")
            self("s_endpgm")
            return
        if Asm.TS:
            from layout import WS_TS
            self(f"""
            s_waitcnt vmcnt(0) lgkmcnt(0)
            s_memrealtime s[98:99]
            s_lshl_b32 s100, s2, 4
            s_add_u32 s100, s100, {swave}
            s_lshl_b32 s100, s100, 5
            s_add_u32 s100, s100, {WS_TS + kidx * 131072}
            s_waitcnt lgkmcnt(0)
            s_mov_b64 exec, 1
            v_mov_b32 v0, s88
            v_mov_b32 v1, s98
            v_mov_b32 v2, s89
            v_mov_b32 v3, s90
            v_mov_b32 v4, s91
            v_mov_b32 v5, s92
            v_mov_b32 v6, s93
            v_mov_b32 v7, s94
            v_mov_b32 v8, 0
            buffer_store_dwordx4 v[0:3], v8, {srd}, s100 offen
            buffer_store_dwordx4 v[4:7], v8, {srd}, s100 offen offset:16
            """)
        self("s_endpgm")
    def text(self):
        return "\n".join(self.L) + "\n"

def vr(b, n=1):
    return f"v{b}" if n == 1 else f"v[{b}:{b+n-1}]"
def sr(b, n=1):
    return f"s{b}" if n == 1 else f"s[{b}:{b+n-1}]"

def kernel_desc(name, nvgpr, nsgpr=102):
    acc = (nvgpr + 3) // 4 * 4
    return f""".amdhsa_kernel {name}
  .amdhsa_next_free_vgpr {nvgpr}
  .amdhsa_next_free_sgpr {nsgpr}
  .amdhsa_accum_offset {acc}
  .amdhsa_group_segment_fixed_size 0
  .amdhsa_kernarg_size 88
  .amdhsa_user_sgpr_count 2
  .amdhsa_user_sgpr_kernarg_segment_ptr 1
  .amdhsa_system_sgpr_workgroup_id_x 1
.end_amdhsa_kernel
"""
import struct
def f32(x):
    return "0x%08x" % struct.unpack("<I", struct.pack("<f", x))[0]
```

```python
from asmlib import *
from layout import *

class G:
    def __init__(s, base_v, acc, sets, nsets, lds_red, lds_prog, tag):
        s.vA0, s.vA1, s.vB, s.vL16, s.vPW, s.vPR, s.vPV, s.vT, s.vRW, s.vRR = range(base_v, base_v + 10)
        s.acc = acc; s.sets = sets; s.nsets = nsets
        s.red = lds_red; s.prog = lds_prog; s.tag = tag
        s.phase = 0; s.nspin = 0

def setup(a, g, sj):
    a(f"""
    v_lshlrev_b32 v{g.vL16}, 4, v1
    s_lshr_b32 s36, s{sj}, 1
    s_lshl_b32 s36, s36, 10
    v_add_u32 v{g.vA0}, s36, v{g.vL16}
    v_xor_b32 v{g.vA1}, 0x400, v{g.vA0}         ; m-slot 1
    s_and_b32 s36, s{sj}, 1
    s_lshl_b32 s36, s36, 8
    v_xor_b32 v{g.vB}, s36, v{g.vL16}           ; lane ^ 16*(j&1)
    s_lshl_b32 s36, s{sj}, 2
    s_add_u32 s36, s36, {g.prog}
    v_mov_b32 v{g.vPW}, s36
    v_and_b32 v{g.vPR}, 3, v1
    v_lshlrev_b32 v{g.vPR}, 2, v{g.vPR}
    v_add_u32 v{g.vPR}, {g.prog}, v{g.vPR}
    v_mov_b32 v{g.vPV}, 0
    s_mul_i32 s36, s{sj}, 18432
    s_add_u32 s36, s36, {g.red}
    v_add_u32 v{g.vRR}, s36, v{g.vL16}
    """)

def sync(a, g, use_barrier=False):
    if use_barrier:
        a("s_waitcnt lgkmcnt(0)")
        a("s_barrier")
        return
    arrive(a, g); wait(a, g)

def arrive(a, g):
    g.phase += 1
    a(f"""
    v_mov_b32 v{g.vPV}, {g.phase}
    s_waitcnt lgkmcnt(0)
    ds_write_b32 v{g.vPW}, v{g.vPV}
    """)

def wait(a, g):
    g.nspin += 1
    L = f"{g.tag}_SP{g.nspin}"
    a.label(L)
    a(f"""
    ds_read_b32 v{g.vT}, v{g.vPR}
    s_waitcnt lgkmcnt(0)
    v_cmp_gt_u32 vcc, {g.phase}, v{g.vT}
    s_nop 1
    s_cbranch_vccz {L}_OK
    s_add_u32 s101, s101, 1
    s_cmp_gt_u32 s101, 0x40000
    s_cbranch_scc1 K_END
    s_sleep 0
    s_branch {L}
    """)
    a.label(L + "_OK")

class KLoop:
    def __init__(s, a, g, NB, nk, sA, sB, strideA, strideB, aflag="", accpfx="v", setsz=None, bflag="", planes=False, accumulate=False):
        s.bflag, s.planes, s.accum = bflag, planes, accumulate
        s.a, s.g, s.NB, s.nk, s.sA, s.sB, s.strideA, s.strideB, s.aflag, s.accpfx = a, g, NB, nk, sA, sB, strideA, strideB, aflag, accpfx
        s.toks = {}
        s.setsz = setsz or 20
        s.D = g.nsets - 1
    def loads(s, k):
        a, g, NB = s.a, s.g, s.NB
        b = g.sets + s.setsz * (k % g.nsets)
        def lda(r, va):
            if not s.planes:
                return a.vm(f"buffer_load_dwordx4 {vr(r,4)}, v{va}, s[16:19], s{s.sA} offen {s.aflag}")
            a.vm(f"buffer_load_dwordx2 {vr(r,2)}, v{va}, s[16:19], s{s.sA} offen {s.aflag}")
            return a.vm(f"buffer_load_dwordx2 {vr(r+2,2)}, v{va}, s[16:19], s{s.sA} offen offset:512 {s.aflag}")
        lda(b, g.vA0)
        for nb in range(NB):
            t = a.vm(f"buffer_load_dwordx4 {vr(b+8+4*nb,4)}, v{g.vB}, s[16:19], s{s.sB} offen offset:{1024*nb} {s.bflag}")
        s.toks[(k, 1)] = t
        s.toks[(k, 2)] = lda(b + 4, g.vA1)
        if k + 1 < s.nk:
            a(f"s_add_u32 s{s.sA}, s{s.sA}, {s.strideA}")
            a(f"s_add_u32 s{s.sB}, s{s.sB}, {s.strideB}")
    def prefetch(s):
        for k in range(min(s.D, s.nk)):
            s.loads(k)
    def run(s, hooks={}):
        a, g, NB = s.a, s.g, s.NB
        def R(b, n): return f"{s.accpfx}[{b}:{b+n-1}]"
        for k in range(s.nk):
            b = g.sets + s.setsz * (k % g.nsets)
            if k in hooks: hooks[k]()
            a.wait_vm(s.toks[(k, 1)])
            for nb in range(NB):
                d = g.acc + 16 * (2 * nb)
                a(f"v_mfma_f32_32x32x16_bf16 {R(d,16)}, {vr(b+8+4*nb,4)}, {vr(b,4)}, {R(d,16) if (k or s.accum) else '0'}")
                if nb == 0 and k + s.D < s.nk:
                    s.loads(k + s.D)
            a.wait_vm(s.toks[(k, 2)])
            for nb in range(NB):
                d = g.acc + 16 * (2 * nb + 1)
                a(f"v_mfma_f32_32x32x16_bf16 {R(d,16)}, {vr(b+8+4*nb,4)}, {vr(b+4,4)}, {R(d,16) if (k or s.accum) else '0'}")

def reduce(a, g, NB, sj, use_barrier=False, accpfx="v"):
    a("s_nop 7")
    for x in (1, 2, 3):
        for nb in range(NB):
            r = g.acc + 32 * nb + 16 * (x >> 1) + 8 * (x & 1)
            a(f"ds_write_b128 v{g.vRR}, {vr(r,4)} offset:{(x-1)*6144+2048*nb}")
            a(f"ds_write_b128 v{g.vRR}, {vr(r+4,4)} offset:{(x-1)*6144+2048*nb+1024}")
    RA = [g.vA0, g.vA1, g.vB]
    for x in (1, 2, 3):
        a(f"""
        s_xor_b32 s36, s{sj}, {x}
        s_mul_i32 s36, s36, 18432
        s_add_u32 s36, s36, {g.red + (x-1)*6144}
        v_add_u32 v{RA[x-1]}, s36, v{g.vL16}
        """)
    sync(a, g, use_barrier)
    for nb in range(NB):
        for x in (1, 2, 3):
            r = g.acc + 32 * nb + 16 * (x >> 1) + 8 * (x & 1)
            a(f"ds_read_b128 {vr(r,4)}, v{RA[x-1]} offset:{2048*nb}")
            a(f"ds_read_b128 {vr(r+4,4)}, v{RA[x-1]} offset:{2048*nb+1024}")
        if nb >= 1:
            addup(a, g, nb - 1, 6)
    addup(a, g, NB - 1, 0)

def addup(a, g, nb, cnt):
    a(f"s_waitcnt lgkmcnt({cnt})")
    o = g.acc + 32 * nb
    for i in range(8):
        a(f"v_add_f32 v{o+8+i}, v{o+8+i}, v{o+16+i}")
        a(f"v_add_f32 v{o+i}, v{o+i}, v{o+24+i}")
    for i in range(8):
        a(f"v_add_f32 v{o+i}, v{o+i}, v{o+8+i}")

def bias_load(a, vdst, vboff, srd, soff, nb):
    a.vm(f"buffer_load_dwordx2 {vr(vdst,2)}, v{vboff}, {srd}, s{soff} offen offset:{64*nb}")
    return a.vm(f"buffer_load_dwordx2 {vr(vdst+2,2)}, v{vboff}, {srd}, s{soff} offen offset:{64*nb+16}")

def add_bias(a, o, vb, t):
    for i in range(4):
        a(f"v_lshlrev_b32 v{t}, 16, v{vb+i}")
        a(f"v_and_b32 v{t+1}, 0xffff0000, v{vb+i}")
        a(f"v_add_f32 v{o+2*i}, v{o+2*i}, v{t}")
        a(f"v_add_f32 v{o+2*i+1}, v{o+2*i+1}, v{t+1}")

C1 = -2.0 * 0.7978845608028654 * 1.4426950408889634
C2 = C1 * 0.044715
def gelu(a, o, t, sC2, vC1):
    for i in range(8): a(f"v_mul_f32 v{t+i}, v{o+i}, v{o+i}")
    for i in range(8): a(f"v_fma_f32 v{t+i}, v{t+i}, s{sC2}, v{vC1}")
    for i in range(8): a(f"v_mul_f32 v{t+i}, v{t+i}, v{o+i}")
    for i in range(8): a(f"v_exp_f32 v{t+i}, v{t+i}")
    for i in range(8): a(f"v_add_f32 v{t+i}, 1.0, v{t+i}")
    for i in range(8): a(f"v_rcp_f32 v{t+i}, v{t+i}")
    for i in range(8): a(f"v_mul_f32 v{o+i}, v{o+i}, v{t+i}")

def pack8(a, o, d):
    for i in range(4):
        a(f"v_cvt_pk_bf16_f32 v{d+i}, v{o+2*i}, v{o+2*i+1}")
```

```python
from asmlib import *
from layout import *
import os
ABL = os.environ.get('ABL', '')

class Attn:
    def __init__(s, a):
        s.a = a
    def run(s):
        import mega as M
        a = s.a
        LT, LCH = M.LT, M.LCH
        Q = [4, 10]
        AD = [[16, 17, 18, 19], [20, 21]]
        AD0 = 136
        vT, vT2, vPW, vPR, vPV = 24, 25, 26, 27, 28
        vHH, vM, vVG, vL16, vKG = 29, 30, 31, 2, 3
        P = 32
        KF = [40, 46]
        VF = [52, 60]
        SS = [68, 84]
        O = [100, 116]
        vPC, vPD, vPL = 132, 133, 134
        BAL = int(os.environ.get('BAL', '8'))
        PLO, PHI = 1, 2
        ZP = 0 if 'z' in ABL else 16
        a(f"""
        s_setprio {PLO}
        s_sub_u32 s39, s3, 4                  ; aw
        v_and_b32 v{vM}, 31, v1
        v_lshrrev_b32 v{vHH}, 5, v1
        v_lshlrev_b32 v{vL16}, 4, v1
        s_lshr_b32 s34, s39, 2
        s_and_b32 s35, s39, 3                 ; q group
        s_lshl_b32 s40, s34, 5
        s_add_u32 s40, s40, s35
        s_mul_i32 s40, s40, {KV_TILE}
        s_mul_i32 s41, s80, {KV_HEAD}
        s_add_u32 s40, s40, s41
        s_add_u32 s40, s40, {WS_KV}
        s_mul_i32 s41, s39, {LT}
        s_mov_b32 s46, {M.VMASK}
        s_mov_b32 s47, {M.VMASK}
        v_lshlrev_b32 v{vKG}, 3, v{vM}
        v_lshl_add_u32 v{vKG}, v{vHH}, 8, v{vKG}
        s_lshl_b32 s36, s81, 3
        s_lshl_b32 s37, s35, 1
        s_add_u32 s36, s36, s37
        s_add_u32 s48, s36, s34
        s_xor_b32 s49, s48, 1
        s_mul_i32 s38, s80, 1280
        s_cmp_lg_u32 s39, 0
        s_cbranch_scc1 AT_WAITQ
        """)
        a(f"""
        v_mov_b32 v{vT}, {M.L_RELA}
        ds_read_b32 v{vT2}, v{vT}
        s_waitcnt lgkmcnt(0)
        v_cmp_ne_u32 vcc, 0, v{vT2}
        s_nop 1
        s_cbranch_vccnz AT_GO
        """)
        M.shard_regs(a, vT, vT2, CN_Q, 15)
        M.poll(a, vT, vT2, vPW, int(os.environ.get('QSL', '4')))
        M.lds_add(a, M.L_RELA, vT)
        a("s_branch AT_GO")
        a.label("AT_WAITQ")
        M.lds_wait(a, M.L_RELA, 1, vT, 2)
        a.label("AT_GO")
        a.ts_mark(1)
        def dma(c):
            a(f"""
            s_add_u32 m0, s41, {(c % 4) * LCH}
            s_mov_b64 exec, 0xffffffff
            buffer_load_dwordx4 v{vL16}, s[16:19], s40 offen offset:2048 sc1 lds
            s_mov_b64 exec, -1
            buffer_load_dwordx4 v{vL16}, s[16:19], s40 offen sc1 lds
            buffer_load_dwordx4 v{vL16}, s[16:19], s40 offen offset:1024 sc1 lds
            s_add_u32 s40, s40, {4 * KV_TILE}
            """)
        dma(0)
        for i in range(2):
            a(f"""
            s_mul_i32 s37, s{48+i}, {QBLK}
            s_add_u32 s37, s37, s38
            buffer_load_dwordx2 {vr(Q[i],2)}, v{vKG}, s[16:19], s37 offen offset:{WS_Q} sc1
            buffer_load_dwordx2 {vr(Q[i]+2,2)}, v{vKG}, s[16:19], s37 offen offset:{WS_Q+512} sc1
            buffer_load_dwordx2 {vr(Q[i]+4,2)}, v{vKG}, s[16:19], s37 offen offset:{WS_Q+1024} sc1
            """)
        dma(1)
        dma(2)
        KA, KB, VA, VB = AD[0]
        a(f"""
        v_mul_u32_u24 v{vVG}, 320, v{vHH}
        v_lshl_add_u32 v{vVG}, v{vM}, 4, v{vVG}
        v_add_u32 v{vVG}, 1280, v{vVG}
        v_mov_b32 v{KA}, v{vKG}
        v_mov_b32 v{KB}, {KV_TILE}
        v_mov_b32 v{VA}, {KV_TILE+ZP}
        v_mov_b32 v{VB}, {KV_TILE+ZP}
        s_mov_b32 exec_lo, 0x11000000
        s_mov_b32 exec_hi, 0x11000000
        v_mov_b32 v{VA}, {KV_TILE}
        v_mov_b32 v{VB}, {KV_TILE}
        s_mov_b64 exec, s[46:47]
        v_mov_b32 v{VA}, v{vVG}
        v_add_u32 v{VB}, 640, v{vVG}
        s_mov_b64 exec, 0xffffffff
        v_add_u32 v{KB}, 1024, v{vKG}
        s_mov_b64 exec, -1
        s_lshl_b32 s36, s39, 2
        s_add_u32 s36, s36, {M.L_APROG}
        v_mov_b32 v{vPW}, s36
        v_and_b32 v{vPR}, 7, v1
        v_lshlrev_b32 v{vPR}, 2, v{vPR}
        v_add_u32 v{vPR}, {M.L_APROG}, v{vPR}
        v_mov_b32 v{vPV}, 1
        s_lshl_b32 s36, s35, 2
        s_add_u32 s36, s36, {M.L_PAIR}
        v_mov_b32 v{vPC}, s36
        s_lshl_b32 s45, s34, 1
        s_sub_u32 s45, 1, s45                     ; +1 or -1
        v_mov_b32 v{vPD}, s45
        """)
        for b in range(2):
            for i in range(8):
                a(f"v_mov_b32 v{VF[b]+i}, 0x3f803f80")
        a(f"""
        v_and_b32 v{vT}, 3, v1
        v_mul_u32_u24 v{vT}, {LCH}, v{vT}
        v_add_u32 v{vT}, s41, v{vT}
        ds_write_b128 v{vT}, {vr(VF[0],4)} offset:{KV_TILE}
        """)
        for b in range(2):
            for i in range(16):
                a(f"v_mov_b32 v{O[b]+i}, 0")
        a(f"ds_write_b128 v{vT}, {vr(O[0],4)} offset:{KV_TILE+16}")
        for i in range(8):
            a(f"v_mov_b32 v{P+i}, 0")
        a(f"""
        s_waitcnt vmcnt(6) lgkmcnt(0)
        ds_write_b32 v{vPW}, v{vPV}
        s_mov_b32 s43, 1
        """)
        a.label("AT_W0")
        a(f"""
        s_add_u32 s101, s101, 1
        s_cmp_gt_u32 s101, 0x40000
        s_cbranch_scc1 K_END
        ds_read_b32 v{vT}, v{vPR}
        s_waitcnt lgkmcnt(0)
        v_cmp_gt_u32 vcc, s43, v{vT}
        s_nop 1
        s_cbranch_vccnz AT_W0
        """)
        a.ts_mark(2)
        def rdK(kt):
            h = 0 if kt < 4 else 1
            a(f"ds_read_b64 {vr(KF[kt%2],2)}, v{AD[h][0]} offset:{(kt%4)*LT}")
            a(f"ds_read_b64 {vr(KF[kt%2]+2,2)}, v{AD[h][0]} offset:{(kt%4)*LT+512}")
            a(f"ds_read_b64 {vr(KF[kt%2]+4,2)}, v{AD[h][1]} offset:{(kt%4)*LT}")
        def rdV(kt):
            a(f"ds_read_b128 {vr(VF[kt%2],4)}, v{AD[0][2]} offset:{kt*LT}")
            a(f"ds_read_b128 {vr(VF[kt%2]+4,4)}, v{AD[0][3]} offset:{kt*LT}")
        def qka(sb, kb, q):
            a(f"v_mfma_f32_32x32x16_bf16 {vr(SS[sb],16)}, {vr(KF[kb],4)}, {vr(Q[q],4)}, 0")
        def qkb(sb, kb, q):
            a(f"v_mfma_f32_32x32x8_bf16 {vr(SS[sb],16)}, {vr(KF[kb]+4,2)}, {vr(Q[q]+4,2)}, {vr(SS[sb],16)}")
        def pv(vb, j, q):
            a(f"v_mfma_f32_32x32x16_bf16 {vr(O[q],16)}, {vr(VF[vb]+4*j,4)}, {vr(P+4*j,4)}, {vr(O[q],16)}")
        def rowmax(sr_, dst, tmp, extra=None):
            a(f"v_max3_f32 v{dst}, v{sr_}, v{sr_+1}, v{sr_+2 if extra is None else extra}")
            lo = 3 if extra is None else 2
            for i in range(lo, 15, 2):
                a(f"v_max3_f32 v{dst}, v{dst}, v{sr_+i}, v{sr_+i+1}")
            if extra is None:
                a(f"v_max_f32 v{dst}, v{dst}, v{sr_+15}")
            a(f"""
            v_mov_b32 v{tmp}, v{dst}
            s_nop 1
            v_permlane32_swap_b32 v{dst}, v{tmp}
            v_max_f32 v{dst}, v{dst}, v{tmp}
            """)
        a(f"ds_read_b64 {vr(KF[1],2)}, v{KA}")
        a(f"ds_read_b64 {vr(KF[1]+2,2)}, v{KA} offset:512")
        a(f"ds_read_b64 {vr(KF[1]+4,2)}, v{KB}")
        a(f"s_mul_i32 s36, s34, {4*LT}")
        for i in range(4):
            a(f"v_add_u32 v{AD[0][i]}, s36, v{AD[0][i]}")
        for i in range(4):
            a(f"v_mov_b32 v{AD0+i}, v{AD[0][i]}")
        for i in range(2):
            a(f"v_add_u32 v{AD[1][i]}, {LCH}, v{AD[0][i]}")
        rdK(0)
        a(f"""
        s_mov_b32 exec_lo, 0
        v_mov_b32 v{Q[0]+4}, 0
        v_mov_b32 v{Q[0]+5}, 0
        v_mov_b32 v{Q[1]+4}, 0
        v_mov_b32 v{Q[1]+5}, 0
        s_mov_b64 exec, -1
        s_waitcnt lgkmcnt(3)
        """)
        qka(0, 1, 0); qkb(0, 1, 0)
        qka(1, 1, 1); qkb(1, 1, 1)
        rdK(1)
        a("s_nop 10")
        rowmax(SS[0], vT, vT2)
        rowmax(SS[1], P, P + 1)
        a(f"""
        s_mov_b32 exec_lo, 0
        v_cvt_pk_bf16_f32 v{Q[0]+4}, -v{vT}, 0
        v_cvt_pk_bf16_f32 v{Q[1]+4}, -v{P}, 0
        s_mov_b64 exec, -1
        v_mov_b32 v{P}, 0
        v_mov_b32 v{P+1}, 0
        """)
        for i in range(4):
            a(f"v_mov_b32 v{SS[1]+12+i}, 0")
        a("s_waitcnt lgkmcnt(0)")
        qka(0, 0, 0); qkb(0, 0, 0)
        a(f"""
        s_mov_b32 s43, 2
        s_mov_b32 s44, {LCH}
        s_mov_b32 s42, {3*LCH}
        v_mov_b32 v{vPV}, 2
        s_waitcnt vmcnt(3)
        ds_write_b32 v{vPW}, v{vPV}
        s_nop 4
        """)
        a.raw(".p2align 6")
        a.label("AT_LOOP")
        for u in range(8):
            cur, nxt = u % 2, 1 - u % 2
            tt = u
            sc, sp = SS[cur], SS[nxt]
            ex = lambda i: a(f"v_exp_f32 v{sc+i}, v{sc+i}")
            cv = lambda i: a(f"v_cvt_pk_bf16_f32 v{P+i}, v{sc+2*i}, v{sc+2*i+1}")
            cvp = lambda i: a(f"v_cvt_pk_bf16_f32 v{P+i}, v{sp+2*i}, v{sp+2*i+1}")
            vprev = ((u - 1) // 2) % 2
            knext = ((u + 1) // 2) % 2
            pv(vprev, 0, nxt)
            if u % 2 == 0:
                rdV(u // 2)
            else:
                rdK((u - 1) // 2 + 2)
            if tt == 4:
                a(f"ds_read_b32 v{vT}, v{vPR}")
            bal = BAL and u % BAL == BAL - 1
            if bal:
                a(f"""
                s_mov_b64 exec, 1
                ds_add_rtn_u32 v{vPL}, v{vPC}, v{vPD}
                s_mov_b64 exec, -1
                """)
            ex(0); ex(1); cvp(6); ex(2); cvp(7); ex(3)
            qka(nxt, knext, nxt)
            if tt == 7:
                a(f"s_waitcnt vmcnt(3)")
                a(f"ds_write_b32 v{vPW}, v{vPV}")
                a(f"s_add_u32 s36, s44, {LCH}")
                a(f"s_cmp_eq_u32 s36, {4*LCH}")
                a(f"s_cselect_b32 s36, 0, s36")
            ex(4); ex(5); cv(0); ex(6); cv(1); ex(7)
            qkb(nxt, knext, nxt)
            if tt == 7:
                for i in range(4):
                    a(f"v_add_u32 v{AD[0][i]}, s44, v{AD0+i}")
                for i in range(2):
                    a(f"v_add_u32 v{AD[1][i]}, s36, v{AD0+i}")
                a("s_mov_b32 s44, s36")
            ex(8); ex(9); cv(2); ex(10); cv(3); ex(11)
            pv(vprev, 1, nxt)
            a("s_waitcnt lgkmcnt(0)")
            if tt == 6:
                a("s_add_u32 s43, s43, 1")
                a(f"v_add_u32 v{vPV}, 1, v{vPV}")
            if bal:
                a(f"""
                v_readfirstlane_b32 s36, v{vPL}
                s_setprio {PLO}
                s_mul_i32 s36, s36, s45
                s_cmp_ge_i32 s36, 0
                s_cbranch_scc1 AT_BAL{u}
                s_setprio {PHI}
                """)
                a.label(f"AT_BAL{u}")
            if tt == 7:
                a("s_cmp_le_u32 s43, 9")
            if tt == 4:
                a(f"v_cmp_gt_u32 vcc, s43, v{vT}")
                ex(12)
                a(f"s_cbranch_vccnz AT_SPIN")
                a.label(f"AT_SPUN")
                a(f"""
                s_add_u32 s36, s41, s42
                s_cmp_le_u32 s43, 6
                s_cselect_b32 m0, s36, {M.L_DUMMY}
                s_cselect_b32 s37, s40, {WS_END}
                s_mov_b64 exec, 0xffffffff
                buffer_load_dwordx4 v{vL16}, s[16:19], s37 offen offset:2048 sc1 lds
                s_mov_b64 exec, -1
                buffer_load_dwordx4 v{vL16}, s[16:19], s37 offen sc1 lds
                buffer_load_dwordx4 v{vL16}, s[16:19], s37 offen offset:1024 sc1 lds
                s_add_u32 s40, s40, {4 * KV_TILE}
                s_add_u32 s42, s42, {LCH}
                s_cmp_eq_u32 s42, {4*LCH}
                s_cselect_b32 s42, 0, s42
                """)
                ex(13); cv(4); ex(14); cv(5); ex(15)
            else:
                ex(12); ex(13); cv(4); ex(14); cv(5); ex(15)
        a("s_cbranch_scc1 AT_LOOP")
        sp = SS[1]
        pv(1, 0, 1)
        a(f"v_cvt_pk_bf16_f32 v{P+6}, v{sp+12}, v{sp+13}")
        a(f"v_cvt_pk_bf16_f32 v{P+7}, v{sp+14}, v{sp+15}")
        a(f"v_mov_b32 v{vPV}, 100")
        a(f"s_lshl_b32 s36, s39, 12")
        pv(1, 1, 1)
        a.ts_mark(3)
        a(f"""
        v_add_u32 v{vT2}, s36, v{vL16}
        s_xor_b32 s37, s39, 4
        s_lshl_b32 s37, s37, 2
        s_add_u32 s37, s37, {M.L_APROG}
        v_mov_b32 v{vPR}, s37
        s_nop 7
        """)
        for i in range(4):
            a(f"ds_write_b128 v{vT2}, {vr(O[1]+4*i,4)} offset:{1024*i}")
        a(f"""
        s_waitcnt lgkmcnt(0)
        ds_write_b32 v{vPW}, v{vPV}
        v_xor_b32 v{vT2}, 0x4000, v{vT2}
        """)
        a.label("AT_XW")
        a(f"""
        ds_read_b32 v{vT}, v{vPR}
        s_waitcnt lgkmcnt(0)
        v_cmp_gt_u32 vcc, 100, v{vT}
        s_nop 1
        s_cbranch_vccz AT_XOK
        s_add_u32 s101, s101, 1
        s_cmp_gt_u32 s101, 0x40000
        s_cbranch_scc1 K_END
        s_sleep 1
        s_branch AT_XW
        """)
        a.label("AT_XOK")
        Oo = O[0]
        for i in range(4):
            a(f"ds_read_b128 {vr(O[1]+4*i,4)}, v{vT2} offset:{1024*i}")
        for i in range(4):
            a(f"s_waitcnt lgkmcnt({3-i})")
            for e in range(4):
                a(f"v_add_f32 v{Oo+4*i+e}, v{Oo+4*i+e}, v{O[1]+4*i+e}")
        a(f"v_mul_f32 v{vT}, 0, v{Oo}")
        for i in range(1, 12):
            a(f"v_fmac_f32 v{vT}, 0, v{Oo+i}")
        a(f"""
        v_add_f32 v{vT}, v{vT}, v{Oo+12}
        v_cmp_gt_f32 vcc, {f32(2.0**100)}, v{vT}
        s_nop 1
        s_cmp_eq_u64 vcc, exec
        s_cbranch_scc0 AT_SLOW
        """)
        a.label("AT_FIN")
        a(f"""
        v_rcp_f32 v{vT}, v{Oo+12}
        s_mul_i32 s36, s48, {QBLK}
        s_add_u32 s36, s36, s38
        s_add_u32 s36, s36, {WS_O}
        """)
        for aa in range(3):
            o = Oo + 4 * aa
            for b in range(4):
                a(f"v_mul_f32 v{o+b}, v{vT}, v{o+b}")
            a(f"v_cvt_pk_bf16_f32 v{P+2*aa}, v{o}, v{o+1}")
            a(f"v_cvt_pk_bf16_f32 v{P+2*aa+1}, v{o+2}, v{o+3}")
            if aa == 2:
                a("s_mov_b64 exec, 0xffffffff")
            a(f"buffer_store_dwordx2 {vr(P+2*aa,2)}, v{vKG}, s[16:19], s36 offen offset:{512*aa} sc1")
        a(f"""
        s_mov_b64 exec, -1
        s_lshl_b32 s37, s81, 8
        s_add_u32 s37, s37, {CN_O}
        """)
        M.publish(a, M.L_CNTO, 8, 37, SS[0])
        a.exit(0)
        a.label(f"AT_SPIN")
        a(f"""
        s_add_u32 s101, s101, 1
        s_cmp_gt_u32 s101, 0x40000
        s_cbranch_scc1 K_END
        s_sleep 1
        ds_read_b32 v{vT}, v{vPR}
        s_waitcnt lgkmcnt(0)
        v_cmp_gt_u32 vcc, s43, v{vT}
        s_nop 1
        s_cbranch_vccnz AT_SPIN
        s_branch AT_SPUN
        """)
        a.label("AT_SLOW")
        vMX = SS[1]
        a(f"""
        s_mul_i32 s40, s80, {KV_HEAD}
        s_add_u32 s40, s40, {WS_KV}
        s_mov_b32 s43, 0
        v_mov_b32 v{vMX}, 0xff800000
        s_mov_b32 exec_lo, 0
        v_mov_b32 v{Q[0]+4}, 0
        s_mov_b64 exec, -1
        """)
        for i in range(16):
            a(f"v_mov_b32 v{Oo+i}, 0")
        a.label("AT_SLOOP")
        sc = SS[0]
        a(f"""
        buffer_load_dwordx2 {vr(KF[0],2)}, v{vKG}, s[16:19], s40 offen sc1
        buffer_load_dwordx2 {vr(KF[0]+2,2)}, v{vKG}, s[16:19], s40 offen offset:512 sc1
        buffer_load_dwordx2 {vr(KF[0]+4,2)}, v{vKG}, s[16:19], s40 offen offset:1024 sc1
        s_mov_b64 exec, s[46:47]
        buffer_load_dwordx4 {vr(VF[0],4)}, v{vVG}, s[16:19], s40 offen sc1
        buffer_load_dwordx4 {vr(VF[0]+4,4)}, v{vVG}, s[16:19], s40 offen offset:640 sc1
        s_mov_b64 exec, -1
        s_waitcnt vmcnt(0)
        """)
        qka(0, 0, 0)
        qkb(0, 0, 0)
        a("s_nop 15")
        rowmax(sc, vT, vT2, vMX)
        a(f"""
        v_sub_f32 v{vT2}, v{vMX}, v{vT}
        v_exp_f32 v{vT2}, v{vT2}                ; alpha
        v_mov_b32 v{vMX}, v{vT}
        """)
        for i in range(16):
            a(f"v_sub_f32 v{sc+i}, v{sc+i}, v{vT}")
        for i in range(16):
            a(f"v_exp_f32 v{sc+i}, v{sc+i}")
        for i in range(16):
            a(f"v_mul_f32 v{Oo+i}, v{vT2}, v{Oo+i}")
        for i in range(8):
            a(f"v_cvt_pk_bf16_f32 v{P+i}, v{sc+2*i}, v{sc+2*i+1}")
        a("s_nop 1")
        pv(0, 0, 0)
        pv(0, 1, 0)
        a(f"""
        s_add_u32 s40, s40, {KV_TILE}
        s_add_u32 s43, s43, 1
        s_nop 15
        s_cmp_lt_u32 s43, 64
        s_cbranch_scc1 AT_SLOOP
        s_branch AT_FIN
        """)
```

```python
from asmlib import *
from layout import *
import gemm
from gemm import G
import os
ABL = os.environ.get('ABL', '')

def gen_ffn2(a):
    import mega as M
    g = G(2, 72, 12, 3, M.L_RED, M.L_FPROG, "FF")
    a(f"s_setprio {os.environ.get('FPRIO', '0')}")
    a("s_mov_b32 s50, s3")
    gemm.setup(a, g, 50)
    M.srd(a, 60, 30, D * 2)
    M.srd(a, 64, 72, S * D * 2)
    a(f"""
    s_lshl_b32 s53, s80, 11               ; 2r*1024
    s_mul_i32 s54, s81, 3
    s_lshl_b32 s36, s81, 1
    s_add_u32 s36, s36, 4
    s_cmp_lt_u32 s81, 4
    s_cselect_b32 s54, s54, s36
    s_mul_i32 s70, s50, {27*65536}
    s_add_u32 s70, s70, s53
    s_add_u32 s70, s70, {WS_H}
    s_mul_i32 s71, s50, {27*20}
    s_add_u32 s71, s71, s54
    s_lshl_b32 s71, s71, 10
    s_add_u32 s71, s71, {WS_W2F}
    """)
    T = 12
    def gate(n, first, sleep):
        L = M.uid("GATE")
        a(f"""
        s_cmp_lg_u32 s3, 0
        s_cbranch_scc1 {L}_W
        """)
        if first:
            M.shard_regs(a, T, T + 1, CN_P, 2)
            a(f"""
            s_lshr_b32 s36, s80, 1
            s_lshl_b32 s36, s36, 8
            s_add_u32 s36, s36, {CN_H}
            s_mov_b32 exec_lo, 0
            v_mov_b32 v{T}, s36
            v_mov_b32 v{T+1}, 14
            s_mov_b64 exec, -1
            """)
        else:
            a(f"""
            s_lshr_b32 s36, s80, 2
            s_lshl_b32 s36, s36, 8
            s_add_u32 s36, s36, {CN_O}
            v_mov_b32 v{T}, s36
            v_mov_b32 v{T+1}, 32
            """)
        M.poll(a, T, T + 1, T + 2, sleep)
        M.lds_add(a, M.L_REL, T)
        a(f"s_branch {L}_G")
        a.label(L + "_W")
        M.lds_wait(a, M.L_REL, n, T, 2)
        a.label(L + "_G")
    gate(1, True, 24)
    if 'g' not in ABL: a.ts_mark(5)
    a(f"""
    s_cmp_lt_u32 s81, 4
    s_cbranch_scc0 FF2_NB2
    """)
    KSPLIT = int(os.environ.get('KSPLIT', '27'))
    for NB in (3, 2):
        if NB == 2:
            a.label("FF2_NB2")
            g.nsets = 5; g.acc = 104
        setsz = 20 if NB == 3 else 16
        g.phase = 0
        a.vm_issued = 0
        NL = 6 if NB == 3 else 9
        NR = 10 - NL
        a(f"""
        s_mul_i32 s74, s50, {10*20}
        s_add_u32 s74, s74, s54
        s_lshl_b32 s74, s74, 10
        s_add_u32 s74, s74, {WS_WOF}
        s_add_u32 s75, s74, {NR*20*1024}
        s_mul_i32 s57, s50, 18432
        s_add_u32 s57, s57, {M.L_RED}
        """)
        for k in range(NL):
            a(f"s_add_u32 m0, s57, {k*NB*1024}")
            a("s_nop 0")
            for nb in range(NB):
                a.vm(f"buffer_load_dwordx4 v{g.vB}, s[16:19], s75 offen offset:{1024*nb} sc1 lds")
            a(f"s_add_u32 s75, s75, {20*1024}")
        def pause():
            M.lds_wait(a, M.L_APROG, int(os.environ.get('PAUSEV', '100')), g.vRW - 1, 4)
            a("s_setprio 3")
        kl = gemm.KLoop(a, g, NB, 27, 70, 71, 65536, 20 * 1024, aflag="sc1", setsz=setsz, bflag="sc1")
        kl.prefetch()
        kl.run(hooks={KSPLIT: pause} if (KSPLIT < 27 and NB == 3) else {})
        if 'g' not in ABL: a.ts_mark(6)
        BI = g.sets + 4
        vO = g.sets
        a(f"""
        s_lshr_b32 s36, s50, 1
        s_and_b32 s37, s50, 1
        s_lshl_b32 s72, s54, 6
        s_lshl_b32 s38, s37, 5
        s_add_u32 s72, s72, s38
        s_lshl_b32 s56, s80, 1
        s_add_u32 s56, s56, s36
        s_mul_i32 s56, s56, {32*1280}
        s_add_u32 s56, s56, s72
        v_lshrrev_b32 v{vO+1}, 5, v1
        v_lshlrev_b32 v{vO+1}, 3, v{vO+1}    ; hh*8
        v_and_b32 v{vO}, 31, v1
        v_mul_u32_u24 v{vO}, 1280, v{vO}
        v_add_u32 v{vO}, v{vO}, v{vO+1}
        v_add_u32 v0, v{vO}, v{vO+1}
        """)
        for nb in range(NB):
            gemm.bias_load(a, BI + 4 * nb, vO + 1, "s[60:63]", 72, nb)
            gemm.bias_load(a, BI + 12 + 4 * nb, vO, "s[8:11]", 56, nb)
        a("s_waitcnt vmcnt(0)")
        for nb in range(NB):
            oo = g.acc + 32 * nb
            gemm.add_bias(a, oo, BI + 4 * nb, g.sets + 2)
            gemm.add_bias(a, oo, BI + 12 + 4 * nb, g.sets + 2)
        BR = g.sets + 12
        a("s_setprio 3")
        for k in range(NR):
            for nb in range(NB):
                a(f"buffer_load_dwordx4 {vr(BR+4*(k*NB+nb),4)}, v{g.vB}, s[16:19], s74 offen offset:{1024*nb} sc1")
            a(f"s_add_u32 s74, s74, {20*1024}")
        a(f"""
        s_lshr_b32 s36, s50, 1
        s_lshl_b32 s37, s80, 1
        s_add_u32 s37, s37, s36
        s_mul_i32 s70, s37, {QBLK}
        s_xor_b32 s37, s37, 1
        s_mul_i32 s71, s37, {QBLK}
        s_mul_i32 s36, s50, {10*1024}
        s_add_u32 s36, s36, {WS_O}
        s_add_u32 s70, s70, s36
        s_add_u32 s71, s71, s36
        s_mul_i32 s58, s50, 20480
        v_and_b32 v{g.vT}, 31, v1
        v_lshlrev_b32 v{g.vA0}, 3, v{g.vT}
        v_lshrrev_b32 v{g.vT}, 5, v1
        v_lshl_add_u32 v{g.vA0}, v{g.vT}, 8, v{g.vA0}      ; hh*256 + m*8
        v_add_u32 v{g.vA0}, s58, v{g.vA0}
        v_add_u32 v{g.vA1}, s57, v{g.vL16}
        """)
        M.lds_wait(a, M.L_CNTO, 8, g.vRW - 1, 2)
        gate(2, False, 2)
        if 't' in ABL: a.ts_mark(1)
        a.vm_issued = 0
        tk = {}
        for q in range(3):
            for sl in range(2):
                a(f"s_add_u32 m0, s58, {sl*10240 + q*4096}")
                a("s_nop 0")
                for i in range(4):
                    k = 4 * q + i
                    if k < 10:
                        tk[(k, sl)] = a.vm(f"buffer_load_dwordx4 v{g.vL16}, s[16:19], s{70+sl} offen offset:{1024*i} sc1 lds")
                a(f"s_add_u32 s{70+sl}, s{70+sl}, 4096")
        AR = g.sets
        BS = [BR, BR + 12] if NB == 3 else [BR + 8, BR + 16]
        lt = {}
        a.lg_issued = 0
        def rdA(f):
            k, sl = f // 2, f % 2
            A = AR + 4 * (f % 3)
            a.wait_vm(tk[(k, sl)])
            a.lg(f"ds_read_b64 {vr(A,2)}, v{g.vA0} offset:{sl*10240+k*1024}")
            lt[f] = a.lg(f"ds_read_b64 {vr(A+2,2)}, v{g.vA0} offset:{sl*10240+k*1024+512}")
        def rdB(k):
            for nb in range(NB):
                lt[('b', k)] = a.lg(f"ds_read_b128 {vr(BS[k%2]+4*nb,4)}, v{g.vA1} offset:{((k-NR)*NB+nb)*1024}")
        rdA(0); rdA(1)
        if 't' in ABL: a.ts_mark(2)
        for f in range(20):
            k, sl = f // 2, f % 2
            need = lt[f]
            if k >= NR: need = max(need, lt[('b', k)])
            a.wait_lg(need)
            A = AR + 4 * (f % 3)
            Bk = BR + 4 * NB * k if k < NR else BS[k % 2]
            for nb in range(NB):
                d = g.acc + 32 * nb + 16 * sl
                a(f"v_mfma_f32_32x32x16_bf16 {vr(d,16)}, {vr(Bk+4*nb,4)}, {vr(A,4)}, {vr(d,16)}")
                if nb == 0:
                    if sl == 0 and NR <= k + 1 < 10: rdB(k + 1)
                    if f + 2 < 20: rdA(f + 2)
        if 't' in ABL: a.ts_mark(3)
        if 't' in ABL: a.ts_mark(4)
        gemm.reduce(a, g, NB, 50)
        if 't' in ABL: a.ts_mark(5)
        for nb in range(NB):
            oo = g.acc + 32 * nb
            gemm.pack8(a, oo, oo + 16)
            a("s_nop 1")
            a(f"v_permlane32_swap_b32 v{oo+16}, v{oo+18}")
            a(f"v_permlane32_swap_b32 v{oo+17}, v{oo+19}")
            a(f"buffer_store_dwordx4 {vr(oo+16,4)}, v0, s[64:67], s56 offen offset:{64*nb}")
        a.exit(0)
```

```python
import sys
from mega import gen_mega
def build(parts, path):
    hdr = open("parallel_sum__mha_block__dense_activation_gelu__prompt.s.ref").read().split("; Override launch")[0]
    s = hdr
    s += """; One persistent kernel, 256 workgroups x 12 waves (generated by dev/gen.py, hand-written generator).
; Hand-offs between workgroups: write-through (sc1) stores, drained, then a counter; consumers poll and load with sc1.
"""
    for p in parts:
        s += p[2] + "\n"
    s += '.amdgcn_target "amdgcn-amd-amdhsa--gfx950"\n.text\n.globl parallel_sum__mha_block__dense_activation_gelu__prompt_kernel\n'
    seen = set()
    for p in parts:
        if p[1] in seen: continue
        s += p[0]
        seen.add(p[1])
    s += '.section .rodata,"a"\n'
    seen = set()
    for p in parts:
        if p[1] in seen: continue
        seen.add(p[1])
        s += ".p2align 6\n" + p[1]
    import os
    fa = os.environ.get("FABL", "")
    if fa:
        i, j = s.index("K2_FFN:"), s.index("K2_END:")
        body = s[i:j].split("\n")
        out = []
        for l in body:
            if 'm' in fa and "v_mfma" in l: continue
            if 'l' in fa and "buffer_load_dwordx4" in l: continue
            if 'v' in fa and any(x in l for x in ("v_exp_f32", "v_rcp_f32", "v_mul_f32", "v_fma_f32", "v_add_f32")): continue
            out.append(l)
        s = s[:i] + "\n".join(out) + s[j:]
    if os.environ.get("NOST"):
        i, j = s.index("K_MFMA:"), s.index("M_G2:")
        s = s[:i] + "\n".join(l for l in s[i:j].split("\n") if "buffer_store" not in l) + s[j:]
    if os.environ.get("STFL") is not None:
        i, j = s.index("K_MFMA:"), s.index("M_G2:")
        s = s[:i] + "\n".join((l.replace(" sc1", " " + os.environ["STFL"]) if "buffer_store" in l else l) for l in s[i:j].split("\n")) + s[j:]
    lp = os.environ.get("LPRIO")
    if lp:
        fp = os.environ.get("FPRIO", "2")
        i, j = s.index("K2_FFN:"), s.index("K2_END:")
        body = s[i:j].split("\n")
        out = []
        inl = False
        for l in body:
            isl = "buffer_load_dwordx4" in l
            if isl and not inl:
                out.append(f"    s_setprio {lp}"); inl = True
            elif inl and not isl:
                out.append(f"    s_setprio {fp}"); inl = False
            out.append(l)
        s = s[:i] + "\n".join(out) + s[j:]
    open(path, "w").write(s)
if __name__ == "__main__":
    import asmlib
    if "--ts" in sys.argv:
        asmlib.Asm.TS = True
        sys.argv.remove("--ts")
    out = sys.argv[1] if len(sys.argv) > 1 else "out.s"
    build([gen_mega()], out)
```

```python
from asmlib import *
from layout import *
import gemm
from gemm import G
import os
ABL = os.environ.get('ABL', '')
GM = int(os.environ.get('GM', '0'))
NAME = "parallel_sum__mha_block__dense_activation_gelu__prompt_kernel"

SLOT = 32768
L_MEAN = 131072
L_RINV = L_MEAN + 512
L_MR = L_MEAN + 1024
L_CS = L_MEAN + 1536
LT = KV_TILE + 32
LCH = 8 * LT
L_DUMMY = 4 * LCH
L_RED = 85504
L_SYNC = L_RED + 4 * 18432
L_APROG, L_INV, L_PAIR, L_FPROG = L_SYNC, L_SYNC + 32, L_SYNC + 48, L_SYNC + 64
L_CNTQ, L_CNTH, L_CNTO, L_CNTP, L_REL = L_SYNC + 80, L_SYNC + 84, L_SYNC + 88, L_SYNC + 92, L_SYNC + 96
L_CNTF, L_RELA = L_SYNC + 100, L_SYNC + 104
LDS_TOTAL = L_SYNC + 256
NPIECE = 740
VMASK = "0x000fffff"
DBG = "s[76:79]"

def srd(a, d, base, nbytes):
    a(f"s_mov_b32 s{d}, s{base}")
    a(f"s_mov_b32 s{d+1}, s{base+1}")
    a(f"s_mov_b32 s{d+2}, {nbytes}")
    a(f"s_mov_b32 s{d+3}, 0x00020000")

def tr_pattern(a, vD, vlane, vtmp, hh_mul):
    a(f"""
    v_lshrrev_b32 v{vtmp}, 5, v{vlane}
    v_mul_u32_u24 v{vD}, {hh_mul}, v{vtmp}
    v_bfe_u32 v{vtmp}, v{vlane}, 2, 2
    v_lshl_add_u32 v{vD}, v{vtmp}, 6, v{vD}
    v_bfe_u32 v{vtmp}, v{vlane}, 4, 1
    v_lshl_add_u32 v{vD}, v{vtmp}, 5, v{vD}
    v_and_b32 v{vtmp}, 3, v{vlane}
    v_lshl_add_u32 v{vD}, v{vtmp}, 3, v{vD}
    """)

def bf16r(a, v):
    a(f"v_cvt_pk_bf16_f32 v{v}, v{v}, v{v}")
    a(f"v_and_b32 v{v}, 0xffff0000, v{v}")

_uid = [0]
def uid(p):
    _uid[0] += 1
    return f"{p}{_uid[0]}"

def publish(a, lcnt, nwaves, sword, t):
    L = uid("PUB")
    a(f"""
    v_mov_b32 v{t}, {lcnt}
    v_mov_b32 v{t+1}, 1
    v_mov_b32 v{t+3}, s{sword}
    s_waitcnt vmcnt(0)
    s_mov_b64 exec, 1
    ds_add_rtn_u32 v{t+2}, v{t}, v{t+1}
    s_waitcnt lgkmcnt(0)
    v_readfirstlane_b32 s36, v{t+2}
    s_cmp_lg_u32 s36, {nwaves-1}
    s_cbranch_scc1 {L}
    buffer_atomic_add v{t+1}, v{t+3}, s[16:19], 0 offen sc1
    """)
    a.label(L)
    a("s_mov_b64 exec, -1")

def poll(a, vaddr, vexp, t, sleep=4, srd="s[16:19]"):
    L = uid("POLL")
    a.label(L)
    a(f"""
    buffer_load_dword v{t}, v{vaddr}, {srd}, 0 offen sc1
    s_waitcnt vmcnt(0)
    v_cmp_gt_u32 vcc, v{vexp}, v{t}
    s_nop 1
    s_cbranch_vccz {L}_OK
    s_add_u32 s101, s101, 1
    s_cmp_gt_u32 s101, 0x40000
    s_cbranch_scc1 K_END
    s_sleep {sleep}
    s_branch {L}
    """)
    a.label(L + "_OK")

def lds_add(a, addr, t):
    a(f"""
    v_mov_b32 v{t}, {addr}
    v_mov_b32 v{t+1}, 1
    s_mov_b64 exec, 1
    ds_add_u32 v{t}, v{t+1}
    s_mov_b64 exec, -1
    """)

def lds_wait(a, addr, target, t, sleep=1):
    L = uid("LW")
    a(f"v_mov_b32 v{t}, {addr}")
    a.label(L)
    a(f"""
    ds_read_b32 v{t+1}, v{t}
    s_waitcnt lgkmcnt(0)
    v_cmp_gt_u32 vcc, {target}, v{t+1}
    s_nop 1
    s_cbranch_vccz {L}_OK
    s_add_u32 s101, s101, 1
    s_cmp_gt_u32 s101, 0x40000
    s_cbranch_scc1 K_END
    s_sleep {sleep}
    s_branch {L}
    """)
    a.label(L + "_OK")

def lds_sync(a, addr, target, t):
    lds_add(a, addr, t)
    lds_wait(a, addr, target, t)

def kv_acquire_begin(a, t):
    L = uid("KVA")
    a(f"""
    s_cmp_lg_u32 s3, 2
    s_cbranch_scc1 {L}
    """)
    lds_wait(a, L_RELA, 1, t, 2)
    a("buffer_inv sc1")
    a.label(L)

def kv_acquire_end(a, t):
    L = uid("KVE")
    a(f"""
    v_mov_b32 v{t}, {L_INV}
    v_mov_b32 v{t+1}, 1000
    s_cmp_lg_u32 s3, 2
    s_cbranch_scc1 {L}
    s_waitcnt vmcnt(0)
    ds_write_b32 v{t}, v{t+1}
    """)
    a.label(L)

def init_seen(a, t):
    a(f"""
    v_and_b32 v{t}, 15, v1
    v_lshlrev_b32 v{t}, 2, v{t}
    v_add_u32 v{t}, {DB_ST*4}, v{t}
    v_mov_b32 v{t+1}, 1
    """)
    poll(a, t, t + 1, t + 2, 16, DBG)

def shard_regs(a, va, ve, base, expect):
    a(f"""
    v_and_b32 v{va}, 15, v1
    v_lshlrev_b32 v{va}, 8, v{va}
    v_add_u32 v{va}, {base}, v{va}
    v_mov_b32 v{ve}, {expect}
    """)

def gen_prep(a):
    vG, vT, vL16, vPL, vTR, vD, vO = 2, 3, 4, 5, 6, 8, 56
    a(f"""
    s_mul_i32 s47, s32, 12
    s_add_u32 s47, s47, s3
    v_lshlrev_b32 v{vL16}, 4, v1
    v_bfe_u32 v{vT}, v1, 2, 2
    v_mul_u32_u24 v{vG}, 1280, v{vT}
    v_and_b32 v{vT}, 3, v1
    v_lshl_add_u32 v{vG}, v{vT}, 4, v{vG}
    v_lshrrev_b32 v{vT}, 4, v1
    v_lshl_add_u32 v{vG}, v{vT}, 6, v{vG}
    """)
    tr_pattern(a, vTR, 1, vT, 1024)
    a(f"""
    s_lshl_b32 s36, s3, 12
    v_add_u32 v{vTR}, s36, v{vTR}
    v_add_u32 v{vPL}, s36, v{vL16}
    """)
    def issue(r, off):
        a(f"""
        s_add_u32 s40, s47, {off}
        s_min_u32 s40, s40, {NPIECE-1}
        s_cmp_lt_u32 s40, 540
        s_cselect_b32 s36, 0, 540
        s_cselect_b32 s20, s28, s24
        s_cselect_b32 s21, s29, s25
        s_mov_b32 s22, {640*640*2}
        s_cselect_b32 s22, {1728*640*2}, s22
        s_mov_b32 s23, 0x00020000
        s_sub_u32 s36, s40, s36
        s_mul_i32 s37, s36, {(1<<20)//5+1}
        s_lshr_b32 s37, s37, 20              ; kstep
        s_mul_i32 s38, s37, 5
        s_sub_u32 s36, s36, s38              ; cb
        s_mul_i32 s37, s37, {16*1280}
        s_lshl_b32 s36, s36, 8
        s_add_u32 s37, s37, s36
        s_lshl_b32 s{42+r}, s40, 12
        s_add_u32 s{42+r}, s{42+r}, {WS_W2F}
        """)
        for j in range(4):
            a(f"buffer_load_dwordx4 {vr(vD+16*r+4*j,4)}, v{vG}, s[20:23], s37 offen")
            a(f"s_add_u32 s37, s37, {4*1280}")
    def finish(r, cnt):
        a(f"s_waitcnt vmcnt({cnt})")
        for j in range(4):
            a(f"ds_write_b128 v{vPL}, {vr(vD+16*r+4*j,4)} offset:{j*1024}")
        a("s_waitcnt lgkmcnt(0)")
        for nb in range(4):
            for q in range(2):
                a(f"ds_read_b64_tr_b16 {vr(vO+16*r+4*nb+2*q,2)}, v{vTR} offset:{q*2048+nb*256}")
        for nb in range(4):
            a(f"s_waitcnt lgkmcnt({6-2*nb})")
            a(f"buffer_store_dwordx4 {vr(vO+16*r+4*nb,4)}, v{vL16}, s[16:19], s{42+r} offen offset:{nb*1024} sc1")
    a(f"""
    s_cmp_eq_u32 s33, 15
    s_cbranch_scc1 PREP3
    """)
    issue(0, 576)
    finish(0, 0)
    a("s_branch PREP_DONE")
    a.label("PREP3")
    for r in range(3): issue(r, 192 * r)
    for r in range(3): finish(r, 8)
    a.label("PREP_DONE")
    a("s_barrier")
    a(f"s_lshl_b32 s37, s32, 8")
    a(f"s_add_u32 s37, s37, {CN_P}")
    publish(a, L_CNTP, 12, 37, 104)

def gen_stats(a):
    XR = 16
    a(f"""
    s_cmp_ge_u32 s3, 8
    s_cbranch_scc1 ST_ZERO
    v_lshrrev_b32 v2, 3, v1
    v_and_b32 v3, 7, v1
    v_mul_u32_u24 v4, 1280, v2
    v_lshl_add_u32 v4, v3, 4, v4
    s_lshl_b32 s36, s32, 3
    s_add_u32 s36, s36, s3
    s_mul_i32 s36, s36, {16*1280}
    s_add_u32 s37, s36, {8*1280}
    """)
    a.vm_issued = 0
    tk = {}
    for g in range(2):
        for i in range(10):
            tk[(g, i)] = a.vm(f"buffer_load_dwordx4 {vr(XR+40*g+4*i,4)}, v4, s[8:11], s{36+g} offen offset:{128*i}")
    vS, vQ = 8, 10
    for i in range(4):
        a(f"v_mov_b32 v{vS+i}, 0")
    a("s_mov_b32 s38, 0x3f803f80")
    for g in range(2):
        for i in range(10):
            a.wait_vm(tk[(g, i)])
            for e in range(4):
                r = XR + 40 * g + 4 * i + e
                a(f"v_dot2c_f32_bf16 v{vS+g}, s38, v{r}")
                a(f"v_dot2c_f32_bf16 v{vQ+g}, v{r}, v{r}")
    a("s_nop 3")
    dpp = "row_mask:0xf bank_mask:0xf"
    for pat in ("quad_perm:[1,0,3,2]", "quad_perm:[2,3,0,1]", "row_half_mirror"):
        for i in range(4):
            a(f"v_add_f32_dpp v{vS+i}, v{vS+i}, v{vS+i} {pat} {dpp}")
    a(f"s_mov_b32 s36, {f32(1.0/640)}")
    for j in range(2):
        a(f"v_mul_f32 v{vS+j}, s36, v{vS+j}")
        a(f"v_mul_f32 v{vQ+j}, s36, v{vQ+j}")
    for j in range(2):
        a(f"v_fma_f32 v{vQ+j}, -v{vS+j}, v{vS+j}, v{vQ+j}")
    for j in range(2):
        a(f"v_max_f32 v{vQ+j}, 0, v{vQ+j}")
    for j in range(2):
        bf16r(a, vS + j); bf16r(a, vQ + j)
    for j in range(2):
        a(f"v_add_f32 v{vQ+j}, {f32(1e-5)}, v{vQ+j}")
    for j in range(2):
        bf16r(a, vQ + j)
    for j in range(2):
        a(f"v_sqrt_f32 v{vQ+j}, v{vQ+j}")
    a("s_nop 0")
    for j in range(2):
        bf16r(a, vQ + j)
    for j in range(2):
        a(f"v_rcp_f32 v{vQ+j}, v{vQ+j}")
    a(f"""
    s_mul_i32 s36, s32, 1536
    s_lshl_b32 s37, s3, 6
    s_add_u32 s36, s36, s37
    s_add_u32 s36, s36, {WS_STAT}
    v_lshlrev_b32 v2, 2, v2
    v_cmp_eq_u32 vcc, 0, v3
    """)
    for j in range(2):
        a(f"v_mul_f32 v{12+j}, v{vS+j}, v{vQ+j}")
    a("s_and_saveexec_b64 s[40:41], vcc")
    for j in range(2):
        a(f"buffer_store_dword v{vS+j}, v2, s[16:19], s36 offen offset:{32*j} sc1")
        a(f"buffer_store_dword v{vQ+j}, v2, s[16:19], s36 offen offset:{512+32*j} sc1")
        a(f"buffer_store_dword v{12+j}, v2, s[16:19], s36 offen offset:{1024+32*j} sc1")
    a(f"""
    s_mov_b64 exec, s[40:41]
    s_branch ST_BAR
    """)
    a.label("ST_ZERO")
    a(f"""
    s_sub_u32 s36, s3, 8
    s_lshl_b32 s36, s36, 12
    s_lshl_b32 s37, s32, 8
    s_add_u32 s36, s36, s37
    s_add_u32 s36, s36, {WS_CNT}
    v_mov_b32 v2, 0
    s_mov_b64 exec, 1
    buffer_store_dword v2, v2, s[16:19], s36 offen sc1
    s_mov_b64 exec, -1
    """)
    a.label("ST_BAR")
    a("s_waitcnt vmcnt(0)")
    a(f"""
    s_waitcnt lgkmcnt(0)
    s_barrier
    s_cmp_lg_u32 s3, 0
    s_cbranch_scc1 ST_DONE
    s_lshl_b32 s36, s32, 2
    v_mov_b32 v2, s36
    v_mov_b32 v3, 1
    s_mov_b64 exec, 1
    buffer_store_dword v3, v2, {DBG}, 0 offen offset:{DB_ST*4} sc1
    s_mov_b64 exec, -1
    """)
    init_seen(a, 2)
    a.label("ST_DONE")
    a.ts_mark(1)

from mega_attn import Attn
from mega_ffn import gen_ffn2

def gen_mega():
    a = Asm()
    a.raw(".p2align 8")
    a.raw(f".type {NAME},@function")
    a.label(NAME)
    a(f"""
    s_cmp_ge_u32 s2, 256
    s_cbranch_scc1 K_END
    """)
    a.ts_start()
    a(f"""
    s_load_dwordx4 s[4:7], s[0:1], 0       ; x, wqkv
    s_load_dwordx4 s[68:71], s[0:1], 72
    s_load_dwordx2 s[24:25], s[0:1], 16    ; wo
    s_load_dwordx4 s[52:55], s[0:1], 32    ; w1, b1
    s_load_dwordx4 s[28:31], s[0:1], 48    ; w2, b2
    s_load_dwordx2 s[72:73], s[0:1], 64    ; out
    s_mov_b32 s101, 0
    v_lshrrev_b32 v1, 6, v0
    s_and_b32 s34, s2, 7                 ; xcd
    v_readfirstlane_b32 s3, v1           ; wave
    v_and_b32 v1, 63, v0                 ; lane
    s_lshr_b32 s35, s2, 3                ; idx
    s_and_b32 s32, s34, 3
    s_lshl_b32 s32, s32, 2
    s_and_b32 s36, s35, 3
    s_add_u32 s32, s32, s36              ; mt
    s_lshr_b32 s33, s35, 2
    s_lshr_b32 s36, s34, 2
    s_sub_u32 s33, s33, s36
    s_and_b32 s33, s33, 7
    s_lshl_b32 s36, s36, 3
    s_add_u32 s33, s33, s36
    s_lshl_b32 s80, s34, 2
    s_lshr_b32 s36, s35, 3
    s_add_u32 s80, s80, s36
    s_and_b32 s81, s35, 7
    s_lshl_b32 s82, s32, 8
    s_add_u32 s82, s82, {CN_Q}
    s_sub_u32 s34, s3, 4
    s_cmp_lt_u32 s34, 4
    s_cselect_b32 s36, s33, 15
    s_cmp_eq_u32 s36, 15
    s_cbranch_scc1 K_NOTLOADER
    """)
    at = Attn(a)
    vXG = [140, 141, 152, 153]; vWG = 142
    vT, vT2, vT3 = 143, 144, 145
    a(f"""
    v_lshrrev_b32 v{vT}, 3, v1
    v_and_b32 v{vT2}, 7, v1
    v_lshrrev_b32 v{vT3}, 4, v1
    v_xor_b32 v{vT2}, v{vT2}, v{vT3}
    v_mul_u32_u24 v{vXG[0]}, 1280, v{vT}
    s_lshl_b32 s36, s32, 2
    s_add_u32 s36, s36, s34
    s_mul_i32 s36, s36, {32*1280}
    v_add_u32 v{vXG[0]}, s36, v{vXG[0]}
    v_add_u32 v{vXG[1]}, {8*1280}, v{vXG[0]}
    v_lshl_add_u32 v{vXG[0]}, v{vT2}, 4, v{vXG[0]}
    v_xor_b32 v{vT2}, 4, v{vT2}
    v_lshl_add_u32 v{vXG[1]}, v{vT2}, 4, v{vXG[1]}
    v_add_u32 v{vXG[2]}, {16*1280}, v{vXG[0]}
    v_add_u32 v{vXG[3]}, {16*1280}, v{vXG[1]}
    s_lshl_b32 s44, s34, 12
    s_and_b32 s36, s32, 3
    s_mul_i32 s86, s36, 5
    s_add_u32 s86, s86, 1
    s_lshr_b32 s86, s86, 1                ; 0,3,5,8
    s_and_b32 s36, s33, 7
    s_mul_i32 s36, s36, 3
    s_add_u32 s86, s86, s36               ; + 3*(jt%8)   (<= 29)
    s_mul_i32 s36, s86, 26
    s_lshr_b32 s36, s36, 8                ; /10
    s_mul_i32 s36, s36, 10
    s_sub_u32 s86, s86, s36
    """)
    if 'O' not in ABL: a("s_mov_b32 s86, 0")
    def wsetup(stride):
        a(f"""
        v_bfe_u32 v{vT}, v1, 2, 2
        v_mul_u32_u24 v{vWG}, {stride}, v{vT}
        v_and_b32 v{vT}, 3, v1
        v_lshl_add_u32 v{vWG}, v{vT}, 4, v{vWG}
        v_lshl_add_u32 v{vWG}, v{vT3}, 6, v{vWG}
        s_mul_i32 s47, s34, {16*stride}
        s_lshl_b32 s36, s33, 8
        s_add_u32 s47, s47, s36
        s_mov_b32 s48, {64*stride}
        s_movk_i32 s49, {4*stride}
        """)
    def issue():
        a(f"""
        s_lshl_b32 s45, s86, 7
        s_mul_i32 s46, s86, s48
        s_add_u32 s46, s46, s47
        s_add_u32 s86, s86, 1
        s_cmp_eq_u32 s86, 10
        s_cselect_b32 s86, 0, s86
        """)
        for j in range(4):
            a(f"s_add_u32 m0, s44, {j*1024}")
            a("s_nop 0")
            a(f"buffer_load_dwordx4 v{vXG[j]}, s[8:11], s45 offen lds")
            a(f"s_add_u32 m0, s44, {16384 + j*1024}")
            a("s_nop 0")
            a(f"buffer_load_dwordx4 v{vWG}, s[12:15], s46 offen lds")
            if j < 3: a(f"s_add_u32 s46, s46, s49")
        a(f"""
        s_add_u32 s44, s44, {SLOT}
        s_and_b32 s44, s44, {4*SLOT-1}
        """)
    wsetup(3840)
    a("s_waitcnt lgkmcnt(0)")
    srd(a, 8, 4, S * D * 2)
    srd(a, 12, 6, D * 3 * D * 2)
    a("s_mov_b32 s87, 0")
    a.label("LD_LOOP")
    issue()
    if os.environ.get('HOLD', '0') == '1':
        a(f"""
        s_add_u32 s87, s87, 1
        s_cmp_lt_u32 s87, 3
        s_cbranch_scc1 LD_LOOP
        s_cmp_eq_u32 s87, 13
        s_cbranch_scc1 LD_LOOP
        s_cmp_eq_u32 s87, 20
        s_cbranch_scc1 LD_DRAIN
        s_waitcnt vmcnt(16)
        s_barrier
        s_cmp_eq_u32 s87, 10
        s_cbranch_scc1 LD_SWITCH
        s_cmp_lg_u32 s87, 12
        s_cbranch_scc1 LD_LOOP
        s_barrier                              ; F1
        s_waitcnt vmcnt(8)
        s_barrier                              ; 10
        s_branch LD_LOOP
        """)
    else:
        a(f"""
        s_add_u32 s87, s87, 1
        s_cmp_lt_u32 s87, 3
        s_cbranch_scc1 LD_LOOP
        s_cmp_eq_u32 s87, 20
        s_cbranch_scc1 LD_DRAIN
        s_cmp_lg_u32 s87, 13
        s_cbranch_scc1 LD_NOF1
        s_barrier                              ; F1
        """)
        a.label("LD_NOF1")
        a(f"""
        s_waitcnt vmcnt(16)
        s_barrier
        s_cmp_lg_u32 s87, 10
        s_cbranch_scc1 LD_LOOP
        """)
    a.label("LD_SWITCH")
    a(f"""
    s_cmp_eq_u32 s33, 14
    s_cbranch_scc1 LD_B
    """)
    srd(a, 12, 52, D * F * 2)
    wsetup(3456)
    a("s_branch LD_LOOP")
    a.label("LD_B")
    a(f"""
    s_waitcnt vmcnt(8)
    s_barrier
    s_waitcnt vmcnt(0)
    s_barrier
    s_barrier                              ; F1
    """)
    srd(a, 16, 70, WS_END)
    srd(a, 76, 68, 256)
    a("s_branch K_PREP")
    a.label("LD_DRAIN")
    srd(a, 16, 70, WS_END)
    srd(a, 76, 68, 256)
    a(f"""
    s_waitcnt vmcnt(16)
    s_barrier
    s_waitcnt vmcnt(8)
    s_barrier
    s_waitcnt vmcnt(0)
    s_barrier
    s_branch H_TAIL
    """)

    a.label("K_NOTLOADER")
    a(f"""
    v_lshlrev_b32 v2, 2, v1
    v_add_u32 v2, {L_SYNC}, v2
    v_mov_b32 v3, 0
    s_cmp_lg_u32 s3, 0
    s_cbranch_scc1 K_NOZ
    ds_write_b32 v2, v3
    """)
    a.label("K_NOZ")
    a("s_waitcnt lgkmcnt(0)")
    srd(a, 8, 4, S * D * 2)
    srd(a, 16, 70, WS_END)
    srd(a, 76, 68, 256)
    a(f"""
    s_cmp_eq_u32 s33, 15
    s_cbranch_scc1 K_STATS
    s_cmp_ge_u32 s3, 4
    s_cbranch_scc1 H_STAT
    """)
    ACC = 64; FR = 32
    vXA = [2, 3, 4, 5]
    vWA = [6, 11]
    vM, vHH, vT, vT2 = 7, 8, 9, 10
    vEA = 12; vSEL = 24; vCSA = 28; EP = 128
    snb = [34, 43]
    SF = 144
    STF = int(os.environ.get('STF', '7'))
    a(f"""
    s_lshr_b32 s34, s3, 1                ; wm
    s_and_b32 s35, s3, 1                 ; wn
    s_xor_b32 s43, s34, 1
    v_and_b32 v{vM}, 31, v1
    v_lshrrev_b32 v{vHH}, 5, v1
    v_bfe_u32 v{vT}, v{vM}, 1, 3
    v_xor_b32 v{vT}, v{vT}, v{vHH}
    v_lshlrev_b32 v{vT}, 4, v{vT}
    v_lshl_add_u32 v{vT}, v{vM}, 7, v{vT}
    s_lshl_b32 s36, s34, 13
    v_add_u32 v{vXA[0]}, s36, v{vT}
    v_xor_b32 v{vXA[1]}, 32, v{vXA[0]}
    v_xor_b32 v{vXA[2]}, 64, v{vXA[0]}
    v_xor_b32 v{vXA[3]}, 0x60, v{vXA[0]}
    v_and_b32 v{vT}, 15, v1
    v_bfe_u32 v{vT2}, v1, 4, 1
    v_cmp_eq_u32 vcc, v{vT}, v{vT2}
    v_mov_b32 v{vT}, 0x3f803f80
    s_nop 1
    v_cndmask_b32 v{vSEL}, 0, v{vT}, vcc
    v_cndmask_b32 v{vSEL+1}, 0, v{vT}, vcc
    v_cndmask_b32 v{vSEL+2}, 0, v{vT}, vcc
    v_cndmask_b32 v{vSEL+3}, 0, v{vT}, vcc
    """)
    tr_pattern(a, vWA[0], 1, vT, 2048)
    a(f"""
    s_lshl_b32 s36, s35, 9
    s_add_u32 s36, s36, 16384
    s_lshl_b32 s37, s34, 8
    s_add_u32 s36, s36, s37
    v_add_u32 v{vWA[0]}, s36, v{vWA[0]}
    v_xor_b32 v{vWA[1]}, 0x100, v{vWA[0]}
    v_mov_b32 v{EP+4}, 0
    v_and_b32 v{SF}, 15, v1
    v_lshlrev_b32 v{SF}, 2, v{SF}
    v_add_u32 v{SF}, {DB_ST*4}, v{SF}
    v_mov_b32 v{SF+1}, 1
    s_cmp_eq_u32 s3, 3
    s_cselect_b32 s86, {STF}, 999
    s_mov_b32 s87, 0
    s_cmp_ge_u32 s33, 10
    s_cbranch_scc1 M_V
    """)
    def read_ops(s, f):
        ops = []
        for r in range(2):
            ops.append(f"ds_read_b64_tr_b16 {vr(f+8+2*r,2)}, v{vWA[0]} offset:{s*4096+r*1024}")
        ops.append(f"ds_read_b128 {vr(f,4)}, v{vXA[s]}")
        ops.append(f"ds_read_b128 {vr(f+4,4)}, v{vXA[s]} offset:4096")
        for r in range(2):
            ops.append(f"ds_read_b64_tr_b16 {vr(f+12+2*r,2)}, v{vWA[1]} offset:{s*4096+r*1024}")
        return ops
    def advance():
        return [f"v_add_u32 v{r}, s85, v{r}" for r in vXA + vWA]
    def kstep(vtype, s, extra):
        f = FR + 16 * (s % 2)
        mf = []
        order = [(0, 0), (0, 1), (1, 0), (1, 1)] if not vtype else [(0, 0), (1, 0), (0, 1), (1, 1)]
        for i, j in order:
            d = ACC + 16 * (2 * i + j)
            if not vtype:
                mf.append(f"v_mfma_f32_32x32x16_bf16 {vr(d,16)}, {vr(f+8+4*i,4)}, {vr(f+4*j,4)}, {vr(d,16)}")
            else:
                mf.append(f"v_mfma_f32_32x32x16_bf16 {vr(d,16)}, {vr(f+4*i,4)}, {vr(f+8+4*j,4)}, {vr(d,16)}")
        mf.insert(3, f"v_mfma_f32_16x16x32_bf16 {vr(vCSA,4)}, {vr(vSEL,4)}, {vr(f+8,4)}, {vr(vCSA,4)}")
        for k, m in enumerate(mf):
            a(m)
            for o in extra[k]: a(o)
    def mainloop(vtype, tag):
        a.label(f"ML{tag}")
        a("s_barrier")
        for o in read_ops(0, FR): a(o)
        for r in list(range(ACC, ACC + 64)) + list(range(vCSA, vCSA + 4)):
            a(f"v_mov_b32 v{r}, 0")
        a("s_add_u32 s84, s87, 9")
        a.raw(".p2align 6")
        a.label(f"ML{tag}_LOOP")
        def stage(last):
            for s in range(4):
                a("s_waitcnt lgkmcnt(0)")
                ex = [[] for _ in range(5)]
                if s < 3:
                    r = read_ops(s + 1, FR + 16 * ((s + 1) % 2))
                    ex[0], ex[1], ex[2] = r[0:2], r[2:4], r[4:6]
                    if s == 0:
                        ex[3] = ["s_add_u32 s87, s87, 1", "s_and_b32 s36, s87, 3", "s_cmp_eq_u32 s36, 0", f"s_cselect_b32 s85, {-3*SLOT & 0xffffffff}, s83"]
                    if s == 2:
                        adv = advance()
                        ex[3], ex[4] = adv[:3], adv[3:]
                elif not last:
                    a("s_barrier")
                    r = read_ops(0, FR)
                    ex[0], ex[1], ex[2] = r[0:2], r[2:4], r[4:6]
                if s == 1 and not last:
                    a(f"""
                    s_cmp_eq_u32 s87, s86
                    s_cbranch_scc1 M_HOOK{tag}
                    """)
                    a.label(f"M_HOOKED{tag}")
                kstep(vtype, s, ex)
        stage(False)
        a(f"""
        s_cmp_lt_u32 s87, s84
        s_cbranch_scc1 ML{tag}_LOOP
        """)
        stage(True)
        a(f"""
        s_cmp_lg_u32 s86, 998
        s_cbranch_scc1 ML{tag}_NS
        s_waitcnt vmcnt(0)
        ds_write_b64 v{SF}, {vr(SF+2,2)}
        ds_write_b64 v{SF}, {vr(SF+4,2)} offset:512
        ds_write_b64 v{SF}, {vr(SF+6,2)} offset:1024
        """)
        a.label(f"ML{tag}_NS")
        a(f"""
        s_lshl_b32 s36, s35, 8
        s_lshl_b32 s37, s34, 7
        s_add_u32 s36, s36, s37
        s_add_u32 s36, s36, {L_CS}
        v_lshl_add_u32 v{vT}, v1, 2, s36
        s_mov_b64 exec, 0xffff
        s_nop 3
        ds_write_b32 v{vT}, v{vCSA}
        ds_write_b32 v{vT}, v{vCSA+1} offset:64
        s_mov_b64 exec, -1
        s_waitcnt lgkmcnt(0)
        """)
    def ln_rows():
        a(f"""
        s_lshl_b32 s36, s34, 8
        s_add_u32 s36, s36, {L_MEAN}
        v_lshl_add_u32 v{vT}, v{vM}, 2, s36          ; (64wm+m)*4
        s_lshl_b32 s36, s35, 8
        s_lshl_b32 s37, s34, 7
        s_add_u32 s36, s36, s37
        s_add_u32 s36, s36, {L_CS}
        v_lshl_add_u32 v{vT2}, v{vHH}, 4, s36        ; (64wn+32nb0+4hh)*4
        v_xor_b32 v{vCSA}, 0x80, v{vT2}              ; slot 1
        ds_read_b32 v20, v{vT}
        ds_read_b32 v21, v{vT} offset:128
        ds_read_b32 v22, v{vT} offset:512
        ds_read_b32 v23, v{vT} offset:640
        """)
        for i in range(2):
            for aa in range(4):
                a(f"ds_read_b128 {vr(EP+16*i+4*aa,4)}, v{vT2 if i == 0 else vCSA} offset:{32*aa}")
    a(f"""
    s_cmp_ge_u32 s33, 5
    s_cselect_b32 s38, 5, 0
    s_sub_u32 s36, s33, s38
    s_lshl_b32 s36, s36, 5
    s_lshl_b32 s37, s35, 4
    s_add_u32 s36, s36, s37              ; ubase
    s_lshl_b32 s37, s32, 2
    s_lshl_b32 s38, s34, 1
    s_add_u32 s37, s37, s38
    s_mov_b32 s39, {QBLK}
    s_mov_b32 s40, {WS_Q}
    s_movk_i32 s41, 1280
    s_cmp_ge_u32 s33, 5
    s_cselect_b32 s39, {KV_TILE}, s39
    s_cselect_b32 s40, {WS_KV}, s40
    s_cselect_b32 s41, {KV_HEAD}, s41
    s_mul_i32 s44, s37, s39
    s_add_u32 s44, s44, s40
    s_add_u32 s45, s44, s39
    """)
    for i in range(2):
        a(f"""
        s_lshl_b32 s38, s{snb[i]}, 3
        s_add_u32 s38, s38, s36
        v_add_u32 v{vT2}, s38, v{vHH}
        """)
        for aa in range(4):
            e = vEA + i * 4 + aa
            a(f"""
            v_add_u32 v20, {2*aa}, v{vT2}           ; u
            v_mul_u32_u24 v21, 205, v20
            v_lshrrev_b32 v21, 10, v21              ; u/5
            v_mul_u32_u24 v22, 5, v21
            v_sub_u32 v20, v20, v22                 ; u%5
            v_mul_lo_u32 v{e}, v21, s41
            v_lshl_add_u32 v{e}, v20, 8, v{e}
            v_lshl_add_u32 v{e}, v{vM}, 3, v{e}
            """)
    a(f"""
    s_mov_b32 s83, {SLOT}
    """)
    mainloop(False, "A")
    a(f"""
    s_cmp_gt_u32 s87, 10
    s_cbranch_scc1 M_GELU
    s_barrier                            ; F1
    """)
    a.ts_mark(1)
    ln_rows()
    a(f"""
    s_cmp_lt_u32 s33, 5
    s_cselect_b32 s36, {f32(QSCALE)}, 1.0
    s_waitcnt lgkmcnt(0)
    v_mul_f32 v22, s36, v22
    v_mul_f32 v23, s36, v23
    """)
    for mb in range(2):
        for i in range(2):
            for aa in range(4):
                d = ACC + 16 * (2 * i + mb) + 4 * aa
                for b in range(4):
                    a(f"v_fma_f32 v{d+b}, -v{20+mb}, v{EP+16*i+4*aa+b}, v{d+b}")
                for b in range(4):
                    a(f"v_mul_f32 v{d+b}, v{22+mb}, v{d+b}")
                a(f"v_cvt_pk_bf16_f32 v{d}, v{d}, v{d+1}")
                a(f"v_cvt_pk_bf16_f32 v{d+1}, v{d+2}, v{d+3}")
                a(f"buffer_store_dwordx2 {vr(d,2)}, v{vEA+i*4+aa}, s[16:19], s{44+mb} offen sc1")
    a.label("M_G2")
    a.ts_mark(2)
    PUBS = int(os.environ.get('PUBS', '11'))
    CQS = int(os.environ.get('CQS', '18'))
    a(f"""
    s_setprio 3
    s_movk_i32 s86, {PUBS}
    s_branch MLA
    """)
    def stat_hook(tag):
        a(f"""
        s_cmp_lg_u32 s86, {STF}
        s_cbranch_scc1 SH2{tag}
        buffer_load_dword v{SF+2}, v{SF}, {DBG}, 0 offen sc1
        s_movk_i32 s86, {STF+2}
        s_branch M_HOOKED{tag}
        """)
        a.label(f"SH2{tag}")
        a(f"""
        s_waitcnt vmcnt(0)
        v_cmp_gt_u32 vcc, v{SF+1}, v{SF+2}
        s_nop 1
        s_cbranch_vccz SH3{tag}
        """)
        poll(a, SF, SF + 1, SF + 2, 6, DBG)
        a.label(f"SH3{tag}")
        a(f"""
        s_mul_i32 s36, s32, 1536
        s_add_u32 s36, s36, {WS_STAT}
        v_lshlrev_b32 v{SF}, 3, v1
        buffer_load_dwordx2 {vr(SF+2,2)}, v{SF}, s[16:19], s36 offen sc1
        buffer_load_dwordx2 {vr(SF+4,2)}, v{SF}, s[16:19], s36 offen offset:512 sc1
        buffer_load_dwordx2 {vr(SF+6,2)}, v{SF}, s[16:19], s36 offen offset:1024 sc1
        v_add_u32 v{SF}, {L_MEAN}, v{SF}
        s_movk_i32 s86, 998
        s_branch M_HOOKED{tag}
        """)
    a.label("M_HOOKV")
    stat_hook("V")
    a.label("M_HOOKS")
    stat_hook("A")
    a.label("M_HOOKA")
    a(f"""
    s_cmp_lt_u32 s87, 10
    s_cbranch_scc1 M_HOOKS
    s_cmp_lg_u32 s86, {PUBS}
    s_cbranch_scc1 M_HOOK2
    """)
    publish(a, L_CNTQ, 4, 82, EP)
    srd(a, 56, 54, F * 2)
    a(f"v_lshlrev_b32 v{vT}, 3, v{vHH}")
    for i in range(2):
        a(f"""
        s_lshl_b32 s36, s33, 8
        s_lshl_b32 s37, s35, 7
        s_add_u32 s36, s36, s37
        s_lshl_b32 s37, s{snb[i]}, 6
        s_add_u32 s36, s36, s37
        """)
        for aa in range(4):
            r = (12 + 2 * aa) if i == 0 else (160 + 2 * aa)
            a(f"buffer_load_dwordx2 {vr(r,2)}, v{vT}, s[56:59], s36 offen offset:{16*aa}")
    shard_regs(a, EP + 4, EP + 5, CN_Q, 15)
    a(f"""
    s_cmp_eq_u32 s3, 2
    s_cselect_b32 s86, {CQS}, 999
    s_branch M_HOOKEDA
    """)
    a.label("M_HOOK2")
    a(f"""
    s_add_u32 s86, s86, 1
    s_bitcmp1_b32 s86, 0
    s_cbranch_scc0 M_HOOK3
    buffer_load_dword v{EP+6}, v{EP+4}, s[16:19], 0 offen sc1
    s_branch M_HOOKEDA
    """)
    a.label("M_HOOK3")
    a(f"""
    s_waitcnt vmcnt(0)
    v_cmp_gt_u32 vcc, v{EP+5}, v{EP+6}
    s_nop 1
    s_cbranch_vccnz M_HOOKEDA
    s_movk_i32 s86, 999
    """)
    lds_add(a, L_RELA, EP + 8)
    a("s_branch M_HOOKEDA")
    a.label("M_V")
    a(f"""
    s_sub_u32 s36, s33, 10
    s_lshl_b32 s36, s36, 7
    s_lshl_b32 s37, s35, 6
    s_add_u32 s36, s36, s37
    s_lshl_b32 s37, s32, 2
    s_lshl_b32 s38, s34, 1
    s_add_u32 s37, s37, s38              ; tile0
    s_mul_i32 s44, s37, {KV_TILE}
    s_add_u32 s44, s44, {WS_KV+1280}
    s_mov_b32 s37, {KV_HEAD}
    s_mov_b32 s83, {SLOT}
    """)
    for i in range(2):
        e = vEA + i
        a(f"""
        s_lshl_b32 s38, s{snb[i]}, 5
        s_add_u32 s38, s38, s36
        v_add_u32 v20, s38, v{vM}               ; c
        v_mul_u32_u24 v21, 3277, v20
        v_lshrrev_b32 v21, 16, v21              ; h = c/20
        v_mul_u32_u24 v22, 20, v21
        v_sub_u32 v20, v20, v22                 ; d
        v_mul_lo_u32 v{e}, v21, s37
        v_lshl_add_u32 v{e}, v20, 4, v{e}
        v_mul_u32_u24 v22, 320, v{vHH}
        v_add_u32 v{e}, v{e}, v22
        """)
    for e in range(vEA + 2, vEA + 8):
        a(f"v_mov_b32 v{e}, 0")
    a("s_mov_b32 s45, s44")
    mainloop(True, "V")
    a("s_barrier")
    a.ts_mark(1)
    a(f"""
    s_lshl_b32 s36, s35, 8
    s_lshl_b32 s37, s34, 7
    s_add_u32 s36, s36, s37
    s_add_u32 s36, s36, {L_CS}
    v_lshl_add_u32 v{vT}, v{vM}, 2, s36          ; (64wn+32nb0+n)*4
    v_xor_b32 v{vCSA}, 0x80, v{vT}
    s_lshl_b32 s36, s34, 8
    s_add_u32 s36, s36, {L_RINV}
    v_lshl_add_u32 v{vT2}, v{vHH}, 4, s36        ; (64wm+4hh)*4
    ds_read_b32 v20, v{vT}
    ds_read_b32 v21, v{vCSA}
    """)
    for mb in range(2):
        for aa in range(4):
            a(f"ds_read_b128 {vr(EP+16*mb+4*aa,4)}, v{vT2} offset:{128*mb+32*aa}")
            a(f"ds_read_b128 {vr(FR+16*mb+4*aa,4)}, v{vT2} offset:{512+128*mb+32*aa}")
    a("s_waitcnt lgkmcnt(0)")
    for mb in range(2):
        for i in range(2):
            for j in range(2):
                d = ACC + 16 * (2 * mb + i) + 8 * j
                for e in range(8):
                    a(f"v_mul_f32 v{d+e}, v{EP+16*mb+8*j+e}, v{d+e}")
                for e in range(8):
                    a(f"v_fma_f32 v{d+e}, -v{FR+16*mb+8*j+e}, v{20+i}, v{d+e}")
                for e in range(4):
                    a(f"v_cvt_pk_bf16_f32 v{d+e}, v{d+2*e}, v{d+2*e+1}")
                a(f"buffer_store_dwordx4 {vr(d,4)}, v{vEA+i}, s[16:19], s44 offen offset:{mb*KV_TILE+j*640} sc1")
    a(f"""
    s_cmp_lg_u32 s33, 14
    s_cbranch_scc1 M_G2
    """)
    publish(a, L_CNTQ, 4, 82, 12)
    a("s_branch K_PREP")

    a.label("H_STAT")
    vT, vT2, vT3, vWM, vXM, vWD = 143, 144, 145, 146, 147, 148
    DW = int(os.environ.get('DW', '3')); WPS = int(os.environ.get('WPS', '3'))
    srd(a, 12, 6, D * 3 * D * 2)
    def warm_setup(stride):
        a(f"""
        s_and_b32 s36, s32, 3
        s_lshl_b32 s36, s36, 2
        s_lshl_b32 s37, s35, 4
        s_add_u32 s36, s36, s37
        s_mul_i32 s83, s36, {stride}
        s_lshl_b32 s37, s33, 8
        s_add_u32 s83, s83, s37                  ; W offset
        s_mov_b32 s48, {64*stride}
        v_lshrrev_b32 v{vT}, 4, v1
        v_mul_u32_u24 v{vT}, {stride}, v{vT}
        v_and_b32 v{vT2}, 15, v1
        v_lshl_add_u32 v{vWM}, v{vT2}, 4, v{vT}
        """)
    a("s_sub_u32 s35, s3, 8")
    warm_setup(3840)
    a(f"""
    s_add_u32 s83, s83, {3*64*3840}
    s_and_b32 s37, s33, 7
    s_lshl_b32 s37, s37, 1
    s_add_u32 s37, s37, s35
    s_lshl_b32 s37, s37, 3
    s_lshl_b32 s38, s32, 7
    s_add_u32 s37, s37, s38
    s_mul_i32 s84, s37, 1280
    s_add_u32 s84, s84, {3*128}
    s_cmp_lt_u32 s35, 2
    s_cselect_b32 s84, s84, 0x40000000
    v_lshrrev_b32 v{vT2}, 3, v1
    v_mul_u32_u24 v{vT2}, 1280, v{vT2}
    v_and_b32 v{vT3}, 7, v1
    v_lshl_add_u32 v{vXM}, v{vT3}, 4, v{vT2}
    s_mov_b32 s86, {3 if 'w' not in ABL else 20}
    s_mov_b32 s85, {3+DW}
    s_mov_b32 s87, 0
    """)
    a.label("WM_LOOP")
    a(f"""
    s_cmp_ge_u32 s86, s85
    s_cbranch_scc1 WM_BAR
    buffer_load_dwordx4 {vr(vWD,4)}, v{vWM}, s[12:15], s83 offen
    buffer_load_dwordx4 {vr(vWD,4)}, v{vXM}, s[8:11], s84 offen
    s_add_u32 s83, s83, s48
    s_add_u32 s84, s84, 128
    s_add_u32 s86, s86, 1
    s_cmp_lg_u32 s86, 10
    s_cbranch_scc1 WM_LOOP
    """)
    srd(a, 12, 52, D * F * 2)
    warm_setup(3456)
    a(f"""
    s_mov_b32 s84, 0x40000000
    s_branch WM_LOOP
    """)
    a.label("WM_BAR")
    a(f"""
    s_barrier
    s_add_u32 s85, s85, {WPS}
    s_min_u32 s85, s85, 20
    s_add_u32 s87, s87, 1
    s_cmp_lg_u32 s87, 11
    s_cbranch_scc1 WM_N11
    s_cmp_eq_u32 s33, 14
    s_cbranch_scc1 K_PREP
    """)
    a.label("WM_N11")
    a(f"""
    s_cmp_lt_u32 s87, 21
    s_cbranch_scc1 WM_LOOP
    """)
    a.label("H_TAIL")
    at.run()

    vM, vHH, vT, vT2 = 7, 8, 9, 10
    a.label("M_GELU")
    lds_sync(a, L_CNTF, 4, 20)
    a("s_waitcnt vmcnt(0)")
    a.ts_mark(3)
    ln_rows()
    a(f"""
    s_lshl_b32 s36, s33, 2
    s_lshl_b32 s37, s35, 1
    s_add_u32 s36, s36, s37
    s_lshl_b32 s37, s32, 2
    s_lshl_b32 s38, s34, 1
    s_add_u32 s37, s37, s38
    s_lshl_b32 s37, s37, 10              ; (4mt+2wm)*1024
    s_add_u32 s37, s37, {WS_H}
    s_add_u32 s44, s36, s34
    s_lshl_b32 s44, s44, 17
    s_add_u32 s44, s44, s37              ; slot 0
    s_add_u32 s45, s36, s43
    s_lshl_b32 s45, s45, 17
    s_add_u32 s45, s45, s37              ; slot 1
    s_mov_b32 s39, {f32(gemm.C2)}
    v_mov_b32 v{vT}, {f32(gemm.C1)}
    v_lshlrev_b32 v{vT2}, 4, v1
    s_waitcnt lgkmcnt(0)
    """)
    TT = FR + 8; TB = FR
    for i in range(2):
        for half in range(2):
            vb = (12 if i == 0 else 160) + 4 * half
            for e in range(4):
                a(f"v_lshlrev_b32 v{TB+2*e}, 16, v{vb+e}")
                a(f"v_and_b32 v{TB+2*e+1}, 0xffff0000, v{vb+e}")
            for mb in range(2):
                d = ACC + 16 * (2 * i + mb) + 8 * half
                for e in range(8):
                    a(f"v_fma_f32 v{d+e}, -v{20+mb}, v{EP+16*i+8*half+e}, v{d+e}")
                for e in range(8):
                    a(f"v_fma_f32 v{d+e}, v{d+e}, v{22+mb}, v{TB+e}")
                gemm.gelu(a, d, TT, 39, vT)
                gemm.pack8(a, d, d)
                a(f"buffer_store_dwordx4 {vr(d,4)}, v{vT2}, s[16:19], s{44+i} offen offset:{1024*mb} sc1")
            a(f"s_add_u32 s{44+i}, s{44+i}, 65536")
    a(f"""
    s_lshl_b32 s37, s32, 8
    s_add_u32 s37, s37, {CN_H}
    """)
    publish(a, L_CNTH, 4, 37, 12)
    a.label("M_FFN2")
    a.ts_mark(4)
    gen_ffn2(a)
    a.label("K_STATS")
    gen_stats(a)
    a.label("K_PREP")
    gen_prep(a)
    a(f"""
    s_cmp_ge_u32 s3, 4
    s_cbranch_scc1 H_TAIL
    s_branch M_FFN2
    """)
    a.label("K_END")
    a("s_endpgm")
    return a.text(), kernel_desc(NAME, 168), f"; @launch grid=(256,1,1) block=(768,1,1) lds={LDS_TOTAL}"
```

```python
from asmlib import *
from layout import *
import gemm
from gemm import G
import os
ABL = os.environ.get('ABL', '')
NAME = "parallel_sum__mha_block__dense_activation_gelu__prompt_kernel"

SLOT = 32768
L_MEAN = 131072
L_RINV = L_MEAN + 512
L_MR = L_MEAN + 1024
L_CS = L_MEAN + 1536
LT = KV_TILE + 32
LCH = 8 * LT
L_DUMMY = 4 * LCH
L_RED = 85504
L_SYNC = L_RED + 4 * 18432
L_APROG, L_INV, L_PAIR, L_FPROG = L_SYNC, L_SYNC + 32, L_SYNC + 48, L_SYNC + 64
L_CNTQ, L_CNTH, L_CNTO, L_CNTP, L_REL = L_SYNC + 80, L_SYNC + 84, L_SYNC + 88, L_SYNC + 92, L_SYNC + 96
L_CNTF, L_RELA = L_SYNC + 100, L_SYNC + 104
LDS_TOTAL = L_SYNC + 256
NPIECE = 740
VMASK = "0x000fffff"
DBG = "s[76:79]"

def srd(a, d, base, nbytes):
    a(f"s_mov_b32 s{d}, s{base}")
    a(f"s_mov_b32 s{d+1}, s{base+1}")
    a(f"s_mov_b32 s{d+2}, {nbytes}")
    a(f"s_mov_b32 s{d+3}, 0x00020000")

def tr_pattern(a, vD, vlane, vtmp, hh_mul):
    a(f"""
    v_lshrrev_b32 v{vtmp}, 5, v{vlane}
    v_mul_u32_u24 v{vD}, {hh_mul}, v{vtmp}
    v_bfe_u32 v{vtmp}, v{vlane}, 2, 2
    v_lshl_add_u32 v{vD}, v{vtmp}, 6, v{vD}
    v_bfe_u32 v{vtmp}, v{vlane}, 4, 1
    v_lshl_add_u32 v{vD}, v{vtmp}, 5, v{vD}
    v_and_b32 v{vtmp}, 3, v{vlane}
    v_lshl_add_u32 v{vD}, v{vtmp}, 3, v{vD}
    """)

def bf16r(a, v):
    a(f"v_cvt_pk_bf16_f32 v{v}, v{v}, v{v}")
    a(f"v_and_b32 v{v}, 0xffff0000, v{v}")

_uid = [0]
def uid(p):
    _uid[0] += 1
    return f"{p}{_uid[0]}"

def publish(a, lcnt, nwaves, sword, t):
    L = uid("PUB")
    a(f"""
    v_mov_b32 v{t}, {lcnt}
    v_mov_b32 v{t+1}, 1
    v_mov_b32 v{t+3}, s{sword}
    s_waitcnt vmcnt(0)
    s_mov_b64 exec, 1
    ds_add_rtn_u32 v{t+2}, v{t}, v{t+1}
    s_waitcnt lgkmcnt(0)
    v_readfirstlane_b32 s36, v{t+2}
    s_cmp_lg_u32 s36, {nwaves-1}
    s_cbranch_scc1 {L}
    buffer_atomic_add v{t+1}, v{t+3}, s[16:19], 0 offen sc1
    """)
    a.label(L)
    a("s_mov_b64 exec, -1")

def poll(a, vaddr, vexp, t, sleep=4, srd="s[16:19]"):
    L = uid("POLL")
    a.label(L)
    a(f"""
    buffer_load_dword v{t}, v{vaddr}, {srd}, 0 offen sc1
    s_waitcnt vmcnt(0)
    v_cmp_gt_u32 vcc, v{vexp}, v{t}
    s_nop 1
    s_cbranch_vccz {L}_OK
    s_add_u32 s101, s101, 1
    s_cmp_gt_u32 s101, 0x40000
    s_cbranch_scc1 K_END
    s_sleep {sleep}
    s_branch {L}
    """)
    a.label(L + "_OK")

def lds_add(a, addr, t):
    a(f"""
    v_mov_b32 v{t}, {addr}
    v_mov_b32 v{t+1}, 1
    s_mov_b64 exec, 1
    ds_add_u32 v{t}, v{t+1}
    s_mov_b64 exec, -1
    """)

def lds_wait(a, addr, target, t, sleep=1):
    L = uid("LW")
    a(f"v_mov_b32 v{t}, {addr}")
    a.label(L)
    a(f"""
    ds_read_b32 v{t+1}, v{t}
    s_waitcnt lgkmcnt(0)
    v_cmp_gt_u32 vcc, {target}, v{t+1}
    s_nop 1
    s_cbranch_vccz {L}_OK
    s_add_u32 s101, s101, 1
    s_cmp_gt_u32 s101, 0x40000
    s_cbranch_scc1 K_END
    s_sleep {sleep}
    s_branch {L}
    """)
    a.label(L + "_OK")

def lds_sync(a, addr, target, t):
    lds_add(a, addr, t)
    lds_wait(a, addr, target, t)

def kv_acquire_begin(a, t):
    L = uid("KVA")
    a(f"""
    s_cmp_lg_u32 s3, 2
    s_cbranch_scc1 {L}
    """)
    lds_wait(a, L_RELA, 1, t, 2)
    a("buffer_inv sc1")
    a.label(L)

def kv_acquire_end(a, t):
    L = uid("KVE")
    a(f"""
    v_mov_b32 v{t}, {L_INV}
    v_mov_b32 v{t+1}, 1000
    s_cmp_lg_u32 s3, 2
    s_cbranch_scc1 {L}
    s_waitcnt vmcnt(0)
    ds_write_b32 v{t}, v{t+1}
    """)
    a.label(L)

def init_seen(a, t):
    a(f"""
    v_and_b32 v{t}, 15, v1
    v_lshlrev_b32 v{t}, 2, v{t}
    v_add_u32 v{t}, {DB_ST*4}, v{t}
    v_mov_b32 v{t+1}, 1
    """)
    poll(a, t, t + 1, t + 2, 16, DBG)

def shard_regs(a, va, ve, base, expect):
    a(f"""
    v_and_b32 v{va}, 15, v1
    v_lshlrev_b32 v{va}, 8, v{va}
    v_add_u32 v{va}, {base}, v{va}
    v_mov_b32 v{ve}, {expect}
    """)

def gen_prep(a):
    vG, vT, vL16, vPL, vTR, vD, vO = 2, 3, 4, 5, 6, 8, 56
    a(f"""
    s_mul_i32 s47, s32, 12
    s_add_u32 s47, s47, s3
    v_lshlrev_b32 v{vL16}, 4, v1
    v_bfe_u32 v{vT}, v1, 2, 2
    v_mul_u32_u24 v{vG}, 1280, v{vT}
    v_and_b32 v{vT}, 3, v1
    v_lshl_add_u32 v{vG}, v{vT}, 4, v{vG}
    v_lshrrev_b32 v{vT}, 4, v1
    v_lshl_add_u32 v{vG}, v{vT}, 6, v{vG}
    """)
    tr_pattern(a, vTR, 1, vT, 1024)
    a(f"""
    s_lshl_b32 s36, s3, 12
    v_add_u32 v{vTR}, s36, v{vTR}
    v_add_u32 v{vPL}, s36, v{vL16}
    """)
    def issue(r, off):
        a(f"""
        s_add_u32 s40, s47, {off}
        s_min_u32 s40, s40, {NPIECE-1}
        s_cmp_lt_u32 s40, 540
        s_cselect_b32 s36, 0, 540
        s_cselect_b32 s20, s28, s24
        s_cselect_b32 s21, s29, s25
        s_mov_b32 s22, {640*640*2}
        s_cselect_b32 s22, {1728*640*2}, s22
        s_mov_b32 s23, 0x00020000
        s_sub_u32 s36, s40, s36
        s_mul_i32 s37, s36, {(1<<20)//5+1}
        s_lshr_b32 s37, s37, 20              ; kstep
        s_mul_i32 s38, s37, 5
        s_sub_u32 s36, s36, s38              ; cb
        s_mul_i32 s37, s37, {16*1280}
        s_lshl_b32 s36, s36, 8
        s_add_u32 s37, s37, s36
        s_lshl_b32 s{42+r}, s40, 12
        s_add_u32 s{42+r}, s{42+r}, {WS_W2F}
        """)
        for j in range(4):
            a(f"buffer_load_dwordx4 {vr(vD+16*r+4*j,4)}, v{vG}, s[20:23], s37 offen")
            a(f"s_add_u32 s37, s37, {4*1280}")
    def finish(r, cnt):
        a(f"s_waitcnt vmcnt({cnt})")
        for j in range(4):
            a(f"ds_write_b128 v{vPL}, {vr(vD+16*r+4*j,4)} offset:{j*1024}")
        a("s_waitcnt lgkmcnt(0)")
        for nb in range(4):
            for q in range(2):
                a(f"ds_read_b64_tr_b16 {vr(vO+16*r+4*nb+2*q,2)}, v{vTR} offset:{q*2048+nb*256}")
        for nb in range(4):
            a(f"s_waitcnt lgkmcnt({6-2*nb})")
            a(f"buffer_store_dwordx4 {vr(vO+16*r+4*nb,4)}, v{vL16}, s[16:19], s{42+r} offen offset:{nb*1024} sc1")
    a(f"""
    s_cmp_eq_u32 s33, 15
    s_cbranch_scc1 PREP3
    """)
    issue(0, 576)
    finish(0, 0)
    a("s_branch PREP_DONE")
    a.label("PREP3")
    for r in range(3): issue(r, 192 * r)
    for r in range(3): finish(r, 8)
    a.label("PREP_DONE")
    a("s_barrier")
    a(f"s_lshl_b32 s37, s32, 8")
    a(f"s_add_u32 s37, s37, {CN_P}")
    publish(a, L_CNTP, 12, 37, 104)

def gen_stats(a):
    XR = 16
    a(f"""
    s_cmp_ge_u32 s3, 8
    s_cbranch_scc1 ST_ZERO
    v_lshrrev_b32 v2, 3, v1
    v_and_b32 v3, 7, v1
    v_mul_u32_u24 v4, 1280, v2
    v_lshl_add_u32 v4, v3, 4, v4
    s_lshl_b32 s36, s32, 3
    s_add_u32 s36, s36, s3
    s_mul_i32 s36, s36, {16*1280}
    s_add_u32 s37, s36, {8*1280}
    """)
    a.vm_issued = 0
    tk = {}
    for g in range(2):
        for i in range(10):
            tk[(g, i)] = a.vm(f"buffer_load_dwordx4 {vr(XR+40*g+4*i,4)}, v4, s[8:11], s{36+g} offen offset:{128*i}")
    vS, vQ = 8, 10
    for i in range(4):
        a(f"v_mov_b32 v{vS+i}, 0")
    a("s_mov_b32 s38, 0x3f803f80")
    for g in range(2):
        for i in range(10):
            a.wait_vm(tk[(g, i)])
            for e in range(4):
                r = XR + 40 * g + 4 * i + e
                a(f"v_dot2c_f32_bf16 v{vS+g}, s38, v{r}")
                a(f"v_dot2c_f32_bf16 v{vQ+g}, v{r}, v{r}")
    a("s_nop 3")
    dpp = "row_mask:0xf bank_mask:0xf"
    for pat in ("quad_perm:[1,0,3,2]", "quad_perm:[2,3,0,1]", "row_half_mirror"):
        for i in range(4):
            a(f"v_add_f32_dpp v{vS+i}, v{vS+i}, v{vS+i} {pat} {dpp}")
    a(f"s_mov_b32 s36, {f32(1.0/640)}")
    for j in range(2):
        a(f"v_mul_f32 v{vS+j}, s36, v{vS+j}")
        a(f"v_mul_f32 v{vQ+j}, s36, v{vQ+j}")
    for j in range(2):
        a(f"v_fma_f32 v{vQ+j}, -v{vS+j}, v{vS+j}, v{vQ+j}")
    for j in range(2):
        a(f"v_max_f32 v{vQ+j}, 0, v{vQ+j}")
    for j in range(2):
        bf16r(a, vS + j); bf16r(a, vQ + j)
    for j in range(2):
        a(f"v_add_f32 v{vQ+j}, {f32(1e-5)}, v{vQ+j}")
    for j in range(2):
        bf16r(a, vQ + j)
    for j in range(2):
        a(f"v_sqrt_f32 v{vQ+j}, v{vQ+j}")
    a("s_nop 0")
    for j in range(2):
        bf16r(a, vQ + j)
    for j in range(2):
        a(f"v_rcp_f32 v{vQ+j}, v{vQ+j}")
    a(f"""
    s_mul_i32 s36, s32, 1536
    s_lshl_b32 s37, s3, 6
    s_add_u32 s36, s36, s37
    s_add_u32 s36, s36, {WS_STAT}
    v_lshlrev_b32 v2, 2, v2
    v_cmp_eq_u32 vcc, 0, v3
    """)
    for j in range(2):
        a(f"v_mul_f32 v{12+j}, v{vS+j}, v{vQ+j}")
    a("s_and_saveexec_b64 s[40:41], vcc")
    for j in range(2):
        a(f"buffer_store_dword v{vS+j}, v2, s[16:19], s36 offen offset:{32*j} sc1")
        a(f"buffer_store_dword v{vQ+j}, v2, s[16:19], s36 offen offset:{512+32*j} sc1")
        a(f"buffer_store_dword v{12+j}, v2, s[16:19], s36 offen offset:{1024+32*j} sc1")
    a(f"""
    s_mov_b64 exec, s[40:41]
    s_branch ST_BAR
    """)
    a.label("ST_ZERO")
    a(f"""
    s_sub_u32 s36, s3, 8
    s_lshl_b32 s36, s36, 12
    s_lshl_b32 s37, s32, 8
    s_add_u32 s36, s36, s37
    s_add_u32 s36, s36, {WS_CNT}
    v_mov_b32 v2, 0
    s_mov_b64 exec, 1
    buffer_store_dword v2, v2, s[16:19], s36 offen sc1
    s_mov_b64 exec, -1
    """)
    a.label("ST_BAR")
    a("s_waitcnt vmcnt(0)")
    a(f"""
    s_waitcnt lgkmcnt(0)
    s_barrier
    s_cmp_lg_u32 s3, 0
    s_cbranch_scc1 ST_DONE
    s_lshl_b32 s36, s32, 2
    v_mov_b32 v2, s36
    v_mov_b32 v3, 1
    s_mov_b64 exec, 1
    buffer_store_dword v3, v2, {DBG}, 0 offen offset:{DB_ST*4} sc1
    s_mov_b64 exec, -1
    """)
    init_seen(a, 2)
    a.label("ST_DONE")
    a.ts_mark(1)

from mega_attn import Attn
from mega_ffn import gen_ffn2

def gen_mega():
    a = Asm()
    a.raw(".p2align 8")
    a.raw(f".type {NAME},@function")
    a.label(NAME)
    a(f"""
    s_cmp_ge_u32 s2, 256
    s_cbranch_scc1 K_END
    """)
    a.ts_start()
    a(f"""
    s_load_dwordx4 s[4:7], s[0:1], 0       ; x, wqkv
    s_load_dwordx4 s[68:71], s[0:1], 72
    s_load_dwordx2 s[24:25], s[0:1], 16    ; wo
    s_load_dwordx4 s[52:55], s[0:1], 32    ; w1, b1
    s_load_dwordx4 s[28:31], s[0:1], 48    ; w2, b2
    s_load_dwordx2 s[72:73], s[0:1], 64    ; out
    s_mov_b32 s101, 0
    v_lshrrev_b32 v1, 6, v0
    s_and_b32 s34, s2, 7                 ; xcd
    v_readfirstlane_b32 s3, v1           ; wave
    v_and_b32 v1, 63, v0                 ; lane
    s_lshr_b32 s35, s2, 3                ; idx
    s_and_b32 s32, s34, 3
    s_lshl_b32 s32, s32, 2
    s_and_b32 s36, s35, 3
    s_add_u32 s32, s32, s36              ; mt
    s_lshr_b32 s33, s35, 2
    s_lshr_b32 s36, s34, 2
    s_sub_u32 s33, s33, s36
    s_and_b32 s33, s33, 7
    s_lshl_b32 s36, s36, 3
    s_add_u32 s33, s33, s36
    s_lshl_b32 s80, s34, 2
    s_lshr_b32 s36, s35, 3
    s_add_u32 s80, s80, s36
    s_and_b32 s81, s35, 7
    s_lshl_b32 s82, s32, 8
    s_add_u32 s82, s82, {CN_Q}
    v_lshlrev_b32 v2, 2, v1
    v_add_u32 v2, {L_SYNC}, v2
    v_mov_b32 v3, 0
    s_cmp_lg_u32 s3, 0
    s_cbranch_scc1 K_NOZ
    ds_write_b32 v2, v3
    """)
    a.label("K_NOZ")
    a("s_waitcnt lgkmcnt(0)")
    srd(a, 8, 4, S * D * 2)
    srd(a, 12, 6, D * 3 * D * 2)
    srd(a, 16, 70, WS_END)
    srd(a, 76, 68, 256)
    a(f"""
    s_cmp_eq_u32 s33, 15
    s_cbranch_scc1 K_STATS
    s_cmp_lt_u32 s3, 4
    s_cbranch_scc1 K_MFMA
    """)
    at = Attn(a)
    vXG = [140, 141, 152, 153]; vWG = 142
    vT, vT2, vT3 = 143, 144, 145
    vWM, vXM, vWD = 146, 147, 148
    DW = int(os.environ.get('DW', '3'))
    a(f"""
    s_sub_u32 s34, s3, 4                  ; hw 0..7
    s_cmp_ge_u32 s34, 4
    s_cbranch_scc1 H_WARM
    v_lshrrev_b32 v{vT}, 3, v1
    v_and_b32 v{vT2}, 7, v1
    v_lshrrev_b32 v{vT3}, 4, v1
    v_xor_b32 v{vT2}, v{vT2}, v{vT3}
    v_mul_u32_u24 v{vXG[0]}, 1280, v{vT}
    s_lshl_b32 s36, s32, 2
    s_add_u32 s36, s36, s34
    s_mul_i32 s36, s36, {32*1280}
    v_add_u32 v{vXG[0]}, s36, v{vXG[0]}
    v_add_u32 v{vXG[1]}, {8*1280}, v{vXG[0]}
    v_lshl_add_u32 v{vXG[0]}, v{vT2}, 4, v{vXG[0]}
    v_xor_b32 v{vT2}, 4, v{vT2}
    v_lshl_add_u32 v{vXG[1]}, v{vT2}, 4, v{vXG[1]}
    v_add_u32 v{vXG[2]}, {16*1280}, v{vXG[0]}
    v_add_u32 v{vXG[3]}, {16*1280}, v{vXG[1]}
    s_lshl_b32 s44, s34, 12
    """)
    def wsetup(stride):
        a(f"""
        v_bfe_u32 v{vT}, v1, 2, 2
        v_mul_u32_u24 v{vWG}, {stride}, v{vT}
        v_and_b32 v{vT}, 3, v1
        v_lshl_add_u32 v{vWG}, v{vT}, 4, v{vWG}
        v_lshrrev_b32 v{vT}, 4, v1
        v_lshl_add_u32 v{vWG}, v{vT}, 6, v{vWG}
        s_mul_i32 s46, s34, {16*stride}
        s_lshl_b32 s36, s33, 8
        s_add_u32 s46, s46, s36
        s_mov_b32 s45, 0
        """)
    toks = {}
    a.vm_issued = 0
    def loads(st):
        slot = st % 4
        stride = 3840 if st < 10 else 3456
        if st == 0: wsetup(3840)
        if st == 10:
            srd(a, 12, 52, D * F * 2)
            wsetup(3456)
        for j in range(4):
            a(f"s_add_u32 m0, s44, {slot*SLOT + j*1024}")
            a("s_nop 0")
            a.vm(f"buffer_load_dwordx4 v{vXG[j]}, s[8:11], s45 offen lds")
            a(f"s_add_u32 m0, s44, {slot*SLOT + 16384 + j*1024}")
            a("s_nop 0")
            toks[st] = a.vm(f"buffer_load_dwordx4 v{vWG}, s[12:15], s46 offen lds")
            a(f"s_add_u32 s46, s46, {4*stride if j < 3 else 52*stride}")
        a("s_add_u32 s45, s45, 128")
    for st in range(3):
        loads(st)
    for st in range(7):
        a.wait_vm(toks[st])
        a("s_barrier")
        loads(st + 3)
    a(f"""
    s_cmp_eq_u32 s33, 14
    s_cbranch_scc1 H_TYPEB
    """)
    save = a.vm_issued
    for st in range(7, 17):
        a.wait_vm(toks[st])
        a("s_barrier")
        loads(st + 3)
        if st == 9:
            a("s_barrier")
    for st in range(17, 20):
        a.wait_vm(toks[st])
        a("s_barrier")
    a.label("H_TAIL")
    at.run()
    a.label("H_WARM")
    def warm_setup(g2):
        stride = 3456 if g2 else 3840
        if g2: srd(a, 12, 52, D * F * 2)
        a(f"""
        s_sub_u32 s35, s34, 4
        s_and_b32 s36, s32, 3
        s_lshl_b32 s36, s36, 2
        s_lshl_b32 s37, s35, 4
        s_add_u32 s36, s36, s37
        s_mul_i32 s83, s36, {stride}
        s_lshl_b32 s37, s33, 8
        s_add_u32 s83, s83, s37                  ; W offset
        v_lshrrev_b32 v{vT}, 4, v1
        v_mul_u32_u24 v{vT}, {stride}, v{vT}
        v_and_b32 v{vT2}, 15, v1
        v_lshl_add_u32 v{vWM}, v{vT2}, 4, v{vT}
        """)
        if not g2:
            a(f"""
            s_add_u32 s83, s83, {3*64*stride}
            s_and_b32 s37, s33, 7
            s_lshl_b32 s37, s37, 1
            s_add_u32 s37, s37, s35
            s_lshl_b32 s37, s37, 3
            s_lshl_b32 s38, s32, 7
            s_add_u32 s37, s37, s38
            s_mul_i32 s84, s37, 1280
            s_cmp_lt_u32 s35, 2
            s_cselect_b32 s84, s84, 0x40000000
            v_lshrrev_b32 v{vT2}, 3, v1
            v_mul_u32_u24 v{vT2}, 1280, v{vT2}
            v_and_b32 v{vT3}, 7, v1
            v_lshl_add_u32 v{vXM}, v{vT3}, 4, v{vT2}
            """)
    def warm(st):
        if 'w' in ABL or st >= 20: return
        if st == 3: warm_setup(False)
        if st == 10: warm_setup(True)
        a(f"buffer_load_dwordx4 {vr(vWD,4)}, v{vWM}, s[12:15], s83 offen")
        a(f"s_add_u32 s83, s83, {64*(3840 if st < 10 else 3456)}")
        if st < 10:
            a(f"buffer_load_dwordx4 {vr(vWD,4)}, v{vXM}, s[8:11], s84 offen offset:{128*st}")
    for w in range(3, 3 + DW): warm(w)
    WPS = int(os.environ.get('WPS', '3'))
    nxt = 3 + DW
    for st in range(10):
        a("s_barrier")
        for _ in range(WPS):
            warm(nxt); nxt += 1
    a(f"""
    s_barrier
    s_cmp_eq_u32 s33, 14
    s_cbranch_scc1 K_PREP
    """)
    for st in range(10, 20):
        a("s_barrier")
        for _ in range(WPS):
            warm(nxt); nxt += 1
    a("s_branch H_TAIL")
    a.label("H_TYPEB")
    a.vm_issued = save
    for st in range(7, 10):
        a.wait_vm(toks[st])
        a("s_barrier")
    a("s_barrier")
    a.label("K_PREP")
    gen_prep(a)
    a(f"""
    s_cmp_ge_u32 s3, 4
    s_cbranch_scc1 H_TAIL
    """)
    a("s_branch M_FFN2")
    a.label("K_STATS")
    gen_stats(a)
    a("s_branch K_PREP")

    a.label("K_MFMA")
    ACC = 64; FR = 32
    vXA = [[2, 3, 4, 5], [160, 161, 162, 163]]
    vWA = [[6, 11], [164, 165]]
    vM, vHH, vT, vT2 = 7, 8, 9, 10
    vEA = 12; vSEL = 24; vCSA = 28; EP = 128
    a(f"""
    s_lshr_b32 s34, s3, 1                ; wm
    s_and_b32 s35, s3, 1                 ; wn
    s_xor_b32 s43, s34, 1
    v_and_b32 v{vM}, 31, v1
    v_lshrrev_b32 v{vHH}, 5, v1
    v_bfe_u32 v{vT}, v{vM}, 1, 3
    v_xor_b32 v{vT}, v{vT}, v{vHH}
    v_lshlrev_b32 v{vT}, 4, v{vT}
    v_lshl_add_u32 v{vT}, v{vM}, 7, v{vT}
    s_lshl_b32 s36, s34, 13
    v_add_u32 v{vXA[0][0]}, s36, v{vT}
    v_xor_b32 v{vXA[0][1]}, 32, v{vXA[0][0]}
    v_xor_b32 v{vXA[0][2]}, 64, v{vXA[0][0]}
    v_xor_b32 v{vXA[0][3]}, 0x60, v{vXA[0][0]}
    v_and_b32 v{vT}, 15, v1
    v_bfe_u32 v{vT2}, v1, 4, 1
    v_cmp_eq_u32 vcc, v{vT}, v{vT2}
    v_mov_b32 v{vT}, 0x3f803f80
    s_nop 1
    v_cndmask_b32 v{vSEL}, 0, v{vT}, vcc
    v_cndmask_b32 v{vSEL+1}, 0, v{vT}, vcc
    v_cndmask_b32 v{vSEL+2}, 0, v{vT}, vcc
    v_cndmask_b32 v{vSEL+3}, 0, v{vT}, vcc
    """)
    tr_pattern(a, vWA[0][0], 1, vT, 2048)
    a(f"""
    s_lshl_b32 s36, s35, 9
    s_add_u32 s36, s36, 16384
    s_lshl_b32 s37, s34, 8
    s_add_u32 s36, s36, s37
    v_add_u32 v{vWA[0][0]}, s36, v{vWA[0][0]}
    v_xor_b32 v{vWA[0][1]}, 0x100, v{vWA[0][0]}
    """)
    for i in range(4):
        a(f"v_add_u32 v{vXA[1][i]}, {2*SLOT}, v{vXA[0][i]}")
    for i in range(2):
        a(f"v_add_u32 v{vWA[1][i]}, {2*SLOT}, v{vWA[0][i]}")
    vW1, vW2, vW3, vWD = 144, 145, 146, 148
    def warm_setup():
        a(f"""
        v_lshrrev_b32 v{vT}, 4, v1
        v_and_b32 v{vT2}, 15, v1
        v_lshlrev_b32 v{vT2}, 4, v{vT2}
        v_mul_u32_u24 v{vW1}, 3840, v{vT}
        v_add_u32 v{vW1}, v{vW1}, v{vT2}
        v_mul_u32_u24 v{vW2}, 3456, v{vT}
        v_add_u32 v{vW2}, v{vW2}, v{vT2}
        v_mul_u32_u24 v{vW3}, 1280, v{vT}
        v_add_u32 v{vW3}, v{vW3}, v{vT2}
        s_and_b32 s36, s32, 3
        s_lshl_b32 s36, s36, 2
        s_lshl_b32 s37, s3, 4
        s_add_u32 s36, s36, s37
        s_lshl_b32 s38, s33, 8
        s_mul_i32 s83, s36, 3840
        s_add_u32 s83, s83, s38
        s_add_u32 s83, s83, {3*64*3840}
        s_mul_i32 s84, s36, 3456
        s_add_u32 s84, s84, s38
        s_and_b32 s85, s33, 7
        s_lshl_b32 s85, s85, 4
        s_lshl_b32 s36, s3, 2
        s_add_u32 s85, s85, s36
        s_lshl_b32 s36, s32, 7
        s_add_u32 s85, s85, s36
        s_mul_i32 s85, s85, 1280
        """)
        srd(a, 20, 52, D * F * 2)
    def warm_a():
        if 'w' in ABL: return
        for st in range(3, 10):
            if st % 2 == 1:
                a(f"buffer_load_dwordx4 {vr(vWD,4)}, v{vW3}, s[8:11], s85 offen offset:{(st//2)*256}")
            a(f"buffer_load_dwordx4 {vr(vWD,4)}, v{vW1}, s[12:15], s83 offen")
            a(f"s_add_u32 s83, s83, {64*3840}")
    def warm_b():
        if 'w' in ABL: return
        a(f"buffer_load_dwordx4 {vr(vWD,4)}, v{vW2}, s[20:23], s84 offen")
        a(f"s_add_u32 s84, s84, {64*3456}")
    SF = 128
    def st_flag():
        L = uid("SF")
        a(f"""
        v_and_b32 v{SF}, 15, v1
        v_lshlrev_b32 v{SF}, 2, v{SF}
        v_add_u32 v{SF}, {DB_ST*4}, v{SF}
        v_mov_b32 v{SF+1}, 1
        s_cmp_lg_u32 s3, 3
        s_cbranch_scc1 {L}
        buffer_load_dword v{SF+2}, v{SF}, {DBG}, 0 offen sc1
        """)
        a.label(L)
    def st_load():
        L = uid("SL")
        a(f"""
        s_cmp_lg_u32 s3, 3
        s_cbranch_scc1 {L}
        s_waitcnt vmcnt(0)
        v_cmp_gt_u32 vcc, v{SF+1}, v{SF+2}
        s_nop 1
        s_cbranch_vccz {L}_GO
        """)
        poll(a, SF, SF + 1, SF + 2, 4, DBG)
        a.label(L + "_GO")
        a(f"""
        s_mul_i32 s36, s32, 1536
        s_add_u32 s36, s36, {WS_STAT}
        v_lshlrev_b32 v{SF}, 3, v1
        buffer_load_dwordx2 {vr(SF+2,2)}, v{SF}, s[16:19], s36 offen sc1
        buffer_load_dwordx2 {vr(SF+4,2)}, v{SF}, s[16:19], s36 offen offset:512 sc1
        buffer_load_dwordx2 {vr(SF+6,2)}, v{SF}, s[16:19], s36 offen offset:1024 sc1
        v_add_u32 v{SF}, {L_MEAN}, v{SF}
        """)
        a.label(L)
    def st_store():
        L = uid("SS")
        a(f"""
        s_cmp_lg_u32 s3, 3
        s_cbranch_scc1 {L}
        s_waitcnt vmcnt(0)
        ds_write_b64 v{SF}, {vr(SF+2,2)}
        ds_write_b64 v{SF}, {vr(SF+4,2)} offset:512
        ds_write_b64 v{SF}, {vr(SF+6,2)} offset:1024
        """)
        a.label(L)
    g1hooks = {}
    g1hooks[25] = st_flag; g1hooks[32] = st_load; g1hooks['end'] = st_store
    a(f"""
    s_cmp_ge_u32 s33, 10
    s_cbranch_scc1 M_V
    """)
    snb = [34, 43]
    def read_ops(t, st0):
        st, s = st0 + t // 4, t % 4
        slot = st % 4
        hs, so = slot // 2, (slot % 2) * SLOT
        f = FR + 16 * (t % 2)
        ops = []
        for r in range(2):
            ops.append(f"ds_read_b64_tr_b16 {vr(f+8+2*r,2)}, v{vWA[hs][0]} offset:{so+s*4096+r*1024}")
        ops.append(f"ds_read_b128 {vr(f,4)}, v{vXA[hs][s]} offset:{so}")
        ops.append(f"ds_read_b128 {vr(f+4,4)}, v{vXA[hs][s]} offset:{so+4096}")
        for r in range(2):
            ops.append(f"ds_read_b64_tr_b16 {vr(f+12+2*r,2)}, v{vWA[hs][1]} offset:{so+s*4096+r*1024}")
        return ops
    def mainloop(vtype, st0, hooks={}, last=False):
        a("s_barrier")
        if 'g' in ABL and st0 == 0: a.ts_mark(3)
        for o in read_ops(0, st0): a(o)
        for t in range(40):
            a("s_waitcnt lgkmcnt(0)")
            if 'g' in ABL and st0 == 0 and t == 12: a.ts_mark(4)
            if 'g' in ABL and st0 == 0 and t == 24: a.ts_mark(5)
            if 'g' in ABL and st0 == 0 and t == 39: a.ts_mark(6)
            if t in hooks: hooks[t]()
            rops = []
            if t + 1 < 40:
                if (t + 1) % 4 == 0:
                    a("s_barrier")
                rops = read_ops(t + 1, st0)
            f = FR + 16 * (t % 2)
            mf = []
            c = vr(vCSA, 4) if t > 0 else "0"
            order = [(0, 0), (0, 1), (1, 0), (1, 1)] if not vtype else [(0, 0), (1, 0), (0, 1), (1, 1)]
            for i, j in order:
                d = ACC + 16 * (2 * i + j)
                cc = vr(d, 16) if t > 0 else "0"
                if not vtype:
                    mf.append(f"v_mfma_f32_32x32x16_bf16 {vr(d,16)}, {vr(f+8+4*i,4)}, {vr(f+4*j,4)}, {cc}")
                else:
                    mf.append(f"v_mfma_f32_32x32x16_bf16 {vr(d,16)}, {vr(f+4*i,4)}, {vr(f+8+4*j,4)}, {cc}")
            mf.insert(3, f"v_mfma_f32_16x16x32_bf16 {vr(vCSA,4)}, {vr(vSEL,4)}, {vr(f+8,4)}, {c}")
            for k, m in enumerate(mf):
                a(m)
                for o in rops[2*k:2*k+2]: a(o)
        if 'end' in hooks: hooks['end']()
        a(f"""
        s_lshl_b32 s36, s35, 8
        s_lshl_b32 s37, s34, 7
        s_add_u32 s36, s36, s37
        s_add_u32 s36, s36, {L_CS}
        v_lshl_add_u32 v{vT}, v1, 2, s36
        s_mov_b64 exec, 0xffff
        s_nop 3
        ds_write_b32 v{vT}, v{vCSA}
        ds_write_b32 v{vT}, v{vCSA+1} offset:64
        s_mov_b64 exec, -1
        s_waitcnt vmcnt(0) lgkmcnt(0)
        """)
        if not last:
            a("s_barrier")
        else:
            lds_sync(a, L_CNTF, 4, 20)
    def ln_rows():
        a(f"""
        s_lshl_b32 s36, s34, 8
        s_add_u32 s36, s36, {L_MEAN}
        v_lshl_add_u32 v{vT}, v{vM}, 2, s36          ; (64wm+m)*4
        s_lshl_b32 s36, s35, 8
        s_lshl_b32 s37, s34, 7
        s_add_u32 s36, s36, s37
        s_add_u32 s36, s36, {L_CS}
        v_lshl_add_u32 v{vT2}, v{vHH}, 4, s36        ; (64wn+32nb0+4hh)*4
        v_xor_b32 v{vCSA}, 0x80, v{vT2}              ; slot 1
        ds_read_b32 v20, v{vT}
        ds_read_b32 v21, v{vT} offset:128
        ds_read_b32 v22, v{vT} offset:512
        ds_read_b32 v23, v{vT} offset:640
        """)
        for i in range(2):
            for aa in range(4):
                a(f"ds_read_b128 {vr(EP+16*i+4*aa,4)}, v{vT2 if i == 0 else vCSA} offset:{32*aa}")
    a(f"""
    s_cmp_ge_u32 s33, 5
    s_cselect_b32 s38, 5, 0
    s_sub_u32 s36, s33, s38
    s_lshl_b32 s36, s36, 5
    s_lshl_b32 s37, s35, 4
    s_add_u32 s36, s36, s37              ; ubase
    s_lshl_b32 s37, s32, 2
    s_lshl_b32 s38, s34, 1
    s_add_u32 s37, s37, s38
    s_mov_b32 s39, {QBLK}
    s_mov_b32 s40, {WS_Q}
    s_movk_i32 s41, 1280
    s_cmp_ge_u32 s33, 5
    s_cselect_b32 s39, {KV_TILE}, s39
    s_cselect_b32 s40, {WS_KV}, s40
    s_cselect_b32 s41, {KV_HEAD}, s41
    s_mul_i32 s44, s37, s39
    s_add_u32 s44, s44, s40
    s_add_u32 s45, s44, s39
    """)
    for i in range(2):
        a(f"""
        s_lshl_b32 s38, s{snb[i]}, 3
        s_add_u32 s38, s38, s36
        v_add_u32 v{vT2}, s38, v{vHH}
        """)
        for aa in range(4):
            e = vEA + i * 4 + aa
            a(f"""
            v_add_u32 v20, {2*aa}, v{vT2}           ; u
            v_mul_u32_u24 v21, 205, v20
            v_lshrrev_b32 v21, 10, v21              ; u/5
            v_mul_u32_u24 v22, 5, v21
            v_sub_u32 v20, v20, v22                 ; u%5
            v_mul_lo_u32 v{e}, v21, s41
            v_lshl_add_u32 v{e}, v20, 8, v{e}
            v_lshl_add_u32 v{e}, v{vM}, 3, v{e}
            """)
    mainloop(False, 0, g1hooks)
    a.ts_mark(1)
    ln_rows()
    a(f"""
    s_cmp_lt_u32 s33, 5
    s_cselect_b32 s36, {f32(QSCALE)}, 1.0
    s_waitcnt lgkmcnt(0)
    v_mul_f32 v22, s36, v22
    v_mul_f32 v23, s36, v23
    """)
    for mb in range(2):
        for i in range(2):
            for aa in range(4):
                d = ACC + 16 * (2 * i + mb) + 4 * aa
                for b in range(4):
                    a(f"v_fma_f32 v{d+b}, -v{20+mb}, v{EP+16*i+4*aa+b}, v{d+b}")
                for b in range(4):
                    a(f"v_mul_f32 v{d+b}, v{22+mb}, v{d+b}")
                a(f"v_cvt_pk_bf16_f32 v{d}, v{d}, v{d+1}")
                a(f"v_cvt_pk_bf16_f32 v{d+1}, v{d+2}, v{d+3}")
                a(f"buffer_store_dwordx2 {vr(d,2)}, v{vEA+i*4+aa}, s[16:19], s{44+mb} offen sc1")
    a("s_branch M_G2")
    a.label("M_V")
    a(f"""
    s_sub_u32 s36, s33, 10
    s_lshl_b32 s36, s36, 7
    s_lshl_b32 s37, s35, 6
    s_add_u32 s36, s36, s37
    s_lshl_b32 s37, s32, 2
    s_lshl_b32 s38, s34, 1
    s_add_u32 s37, s37, s38              ; tile0
    s_mul_i32 s44, s37, {KV_TILE}
    s_add_u32 s44, s44, {WS_KV+1280}
    s_mov_b32 s37, {KV_HEAD}
    """)
    for i in range(2):
        e = vEA + i
        a(f"""
        s_lshl_b32 s38, s{snb[i]}, 5
        s_add_u32 s38, s38, s36
        v_add_u32 v20, s38, v{vM}               ; c
        v_mul_u32_u24 v21, 3277, v20
        v_lshrrev_b32 v21, 16, v21              ; h = c/20
        v_mul_u32_u24 v22, 20, v21
        v_sub_u32 v20, v20, v22                 ; d
        v_mul_lo_u32 v{e}, v21, s37
        v_lshl_add_u32 v{e}, v20, 4, v{e}
        v_mul_u32_u24 v22, 320, v{vHH}
        v_add_u32 v{e}, v{e}, v22
        """)
    mainloop(True, 0, g1hooks)
    a.ts_mark(1)
    a(f"""
    s_lshl_b32 s36, s35, 8
    s_lshl_b32 s37, s34, 7
    s_add_u32 s36, s36, s37
    s_add_u32 s36, s36, {L_CS}
    v_lshl_add_u32 v{vT}, v{vM}, 2, s36          ; (64wn+32nb0+n)*4
    v_xor_b32 v{vCSA}, 0x80, v{vT}
    s_lshl_b32 s36, s34, 8
    s_add_u32 s36, s36, {L_RINV}
    v_lshl_add_u32 v{vT2}, v{vHH}, 4, s36        ; (64wm+4hh)*4
    ds_read_b32 v20, v{vT}
    ds_read_b32 v21, v{vCSA}
    """)
    for mb in range(2):
        for aa in range(4):
            a(f"ds_read_b128 {vr(EP+16*mb+4*aa,4)}, v{vT2} offset:{128*mb+32*aa}")
            a(f"ds_read_b128 {vr(FR+16*mb+4*aa,4)}, v{vT2} offset:{512+128*mb+32*aa}")
    a("s_waitcnt lgkmcnt(0)")
    for mb in range(2):
        for i in range(2):
            for j in range(2):
                d = ACC + 16 * (2 * mb + i) + 8 * j
                for e in range(8):
                    a(f"v_mul_f32 v{d+e}, v{EP+16*mb+8*j+e}, v{d+e}")
                for e in range(8):
                    a(f"v_fma_f32 v{d+e}, -v{FR+16*mb+8*j+e}, v{20+i}, v{d+e}")
                for e in range(4):
                    a(f"v_cvt_pk_bf16_f32 v{d+e}, v{d+2*e}, v{d+2*e+1}")
                a(f"buffer_store_dwordx4 {vr(d,4)}, v{vEA+i}, s[16:19], s44 offen offset:{mb*KV_TILE+j*640} sc1")
    a(f"""
    s_cmp_lg_u32 s33, 14
    s_cbranch_scc1 M_G2
    """)
    publish(a, L_CNTQ, 4, 82, 12)
    a("s_branch K_PREP")
    a.label("M_G2")
    a.ts_mark(2)
    BIAS = 12
    def hook_pub():
        publish(a, L_CNTQ, 4, 82, EP)
        srd(a, 56, 54, F * 2)
        a(f"v_lshlrev_b32 v{vT}, 3, v{vHH}")
        for i in range(2):
            a(f"""
            s_lshl_b32 s36, s33, 8
            s_lshl_b32 s37, s35, 7
            s_add_u32 s36, s36, s37
            s_lshl_b32 s37, s{snb[i]}, 6
            s_add_u32 s36, s36, s37
            """)
            for aa in range(4):
                r = (12 + 2 * aa) if i == 0 else (152 + 2 * aa)
                a(f"buffer_load_dwordx2 {vr(r,2)}, v{vT}, s[56:59], s36 offen offset:{16*aa}")
    def cq_issue():
        L = uid("CQI")
        shard_regs(a, EP + 4, EP + 5, CN_Q, 15)
        a(f"""
        s_cmp_lg_u32 s3, 2
        s_cbranch_scc1 {L}
        buffer_load_dword v{EP+6}, v{EP+4}, s[16:19], 0 offen sc1
        """)
        a.label(L)
    def cq_check():
        L = uid("CQC")
        a(f"""
        s_cmp_lg_u32 s3, 2
        s_cbranch_scc1 {L}
        s_waitcnt vmcnt(0)
        v_cmp_gt_u32 vcc, v{EP+5}, v{EP+6}
        s_nop 1
        s_cbranch_vccnz {L}
        """)
        lds_add(a, L_RELA, EP + 8)
        a("s_waitcnt lgkmcnt(0)")
        a.label(L)
    a("s_setprio 3")
    mainloop(False, 10, {int(os.environ.get('PUBT', '3')): hook_pub, 29: cq_issue, 35: cq_check}, last=True)
    a("s_waitcnt vmcnt(0)")
    if 'g' not in ABL: a.ts_mark(3)
    for k in range(8):
        a(f"v_mov_b32 v{FR+k}, v{152+k}")
    ln_rows()
    a(f"""
    s_lshl_b32 s36, s33, 2
    s_lshl_b32 s37, s35, 1
    s_add_u32 s36, s36, s37
    s_lshl_b32 s37, s32, 2
    s_lshl_b32 s38, s34, 1
    s_add_u32 s37, s37, s38
    s_lshl_b32 s37, s37, 10              ; (4mt+2wm)*1024
    s_add_u32 s37, s37, {WS_H}
    s_add_u32 s44, s36, s34
    s_lshl_b32 s44, s44, 17
    s_add_u32 s44, s44, s37              ; slot 0
    s_add_u32 s45, s36, s43
    s_lshl_b32 s45, s45, 17
    s_add_u32 s45, s45, s37              ; slot 1
    s_mov_b32 s39, {f32(gemm.C2)}
    v_mov_b32 v{vT}, {f32(gemm.C1)}
    v_lshlrev_b32 v{vT2}, 4, v1
    s_waitcnt lgkmcnt(0)
    """)
    TT = FR + 8; TB = FR + 16
    for i in range(2):
        for half in range(2):
            vb = (12 if i == 0 else FR) + 4 * half
            for e in range(4):
                a(f"v_lshlrev_b32 v{TB+2*e}, 16, v{vb+e}")
                a(f"v_and_b32 v{TB+2*e+1}, 0xffff0000, v{vb+e}")
            for mb in range(2):
                d = ACC + 16 * (2 * i + mb) + 8 * half
                for e in range(8):
                    a(f"v_fma_f32 v{d+e}, -v{20+mb}, v{EP+16*i+8*half+e}, v{d+e}")
                for e in range(8):
                    a(f"v_fma_f32 v{d+e}, v{d+e}, v{22+mb}, v{TB+e}")
                gemm.gelu(a, d, TT, 39, vT)
                gemm.pack8(a, d, d)
                a(f"buffer_store_dwordx4 {vr(d,4)}, v{vT2}, s[16:19], s{44+i} offen offset:{1024*mb} sc1")
            a(f"s_add_u32 s{44+i}, s{44+i}, 65536")
    a(f"""
    s_lshl_b32 s37, s32, 8
    s_add_u32 s37, s37, {CN_H}
    """)
    publish(a, L_CNTH, 4, 37, 12)
    a.label("M_FFN2")

    if 'g' not in ABL: a.ts_mark(4)
    gen_ffn2(a)
    a.label("K_END")
    a("s_endpgm")
    return a.text(), kernel_desc(NAME, 168), f"; @launch grid=(256,1,1) block=(768,1,1) lds={LDS_TOTAL}"
```

```python
from asmlib import *
from layout import *
import gemm
from gemm import G
import os
ABL = os.environ.get('ABL', '')

def gen_ffn2(a):
    import mega as M
    g = G(2, 72, 12, 3, M.L_RED, M.L_FPROG, "FF")
    a(f"s_setprio {os.environ.get('FPRIO', '0')}")
    a("s_mov_b32 s50, s3")
    gemm.setup(a, g, 50)
    M.srd(a, 60, 30, D * 2)
    M.srd(a, 64, 72, S * D * 2)
    a(f"""
    s_lshl_b32 s53, s80, 11               ; 2r*1024
    s_mul_i32 s54, s81, 3
    s_lshl_b32 s36, s81, 1
    s_add_u32 s36, s36, 4
    s_cmp_lt_u32 s81, 4
    s_cselect_b32 s54, s54, s36
    s_mul_i32 s70, s50, {27*65536}
    s_add_u32 s70, s70, s53
    s_add_u32 s70, s70, {WS_H}
    s_mul_i32 s71, s50, {27*20}
    s_add_u32 s71, s71, s54
    s_lshl_b32 s71, s71, 10
    s_add_u32 s71, s71, {WS_W2F}
    """)
    T = 12
    def gate(n, first, sleep):
        L = M.uid("GATE")
        a(f"""
        s_cmp_lg_u32 s3, 0
        s_cbranch_scc1 {L}_W
        """)
        if first:
            M.shard_regs(a, T, T + 1, CN_P, 2)
            a(f"""
            s_lshr_b32 s36, s80, 1
            s_lshl_b32 s36, s36, 8
            s_add_u32 s36, s36, {CN_H}
            s_mov_b32 exec_lo, 0
            v_mov_b32 v{T}, s36
            v_mov_b32 v{T+1}, 14
            s_mov_b64 exec, -1
            """)
        else:
            a(f"""
            s_lshr_b32 s36, s80, 2
            s_lshl_b32 s36, s36, 8
            s_add_u32 s36, s36, {CN_O}
            v_mov_b32 v{T}, s36
            v_mov_b32 v{T+1}, 32
            """)
        M.poll(a, T, T + 1, T + 2, sleep)
        if first:
            a(f"""
            s_cmp_ge_u32 s33, 14
            s_cbranch_scc1 {L}_N
            """)
            M.lds_wait(a, M.L_CNTH, 4, T, 2)
            a.label(L + "_N")
        M.lds_add(a, M.L_REL, T)
        a(f"s_branch {L}_G")
        a.label(L + "_W")
        M.lds_wait(a, M.L_REL, n, T, 2)
        a.label(L + "_G")
    gate(1, True, int(os.environ.get('G1S', '24')))
    if 'g' not in ABL: a.ts_mark(5)
    a(f"""
    s_cmp_lt_u32 s81, 4
    s_cbranch_scc0 FF2_NB2
    """)
    KSPLIT = int(os.environ.get('KSPLIT', '27'))
    for NB in (3, 2):
        if NB == 2:
            a.label("FF2_NB2")
            g.nsets = 5; g.acc = 104
        setsz = 20 if NB == 3 else 16
        g.phase = 0
        a.vm_issued = 0
        NL = 6 if NB == 3 else 9
        NR = 10 - NL
        a(f"""
        s_mul_i32 s74, s50, {10*20}
        s_add_u32 s74, s74, s54
        s_lshl_b32 s74, s74, 10
        s_add_u32 s74, s74, {WS_WOF}
        s_add_u32 s75, s74, {NR*20*1024}
        s_mul_i32 s57, s50, 18432
        s_add_u32 s57, s57, {M.L_RED}
        """)
        for k in range(NL):
            a(f"s_add_u32 m0, s57, {k*NB*1024}")
            a("s_nop 0")
            for nb in range(NB):
                a.vm(f"buffer_load_dwordx4 v{g.vB}, s[16:19], s75 offen offset:{1024*nb} sc1 lds")
            a(f"s_add_u32 s75, s75, {20*1024}")
        def pause():
            M.lds_wait(a, M.L_APROG, int(os.environ.get('PAUSEV', '100')), g.vRW - 1, 4)
            a("s_setprio 3")
        kl = gemm.KLoop(a, g, NB, 27, 70, 71, 65536, 20 * 1024, aflag="sc1", setsz=setsz, bflag="sc1")
        kl.prefetch()
        kl.run(hooks={KSPLIT: pause} if (KSPLIT < 27 and NB == 3) else {})
        if 'g' not in ABL: a.ts_mark(6)
        BI = g.sets + 4
        vO = g.sets
        a(f"""
        s_lshr_b32 s36, s50, 1
        s_and_b32 s37, s50, 1
        s_lshl_b32 s72, s54, 6
        s_lshl_b32 s38, s37, 5
        s_add_u32 s72, s72, s38
        s_lshl_b32 s56, s80, 1
        s_add_u32 s56, s56, s36
        s_mul_i32 s56, s56, {32*1280}
        s_add_u32 s56, s56, s72
        v_lshrrev_b32 v{vO+1}, 5, v1
        v_lshlrev_b32 v{vO+1}, 3, v{vO+1}    ; hh*8
        v_and_b32 v{vO}, 31, v1
        v_mul_u32_u24 v{vO}, 1280, v{vO}
        v_add_u32 v{vO}, v{vO}, v{vO+1}
        v_add_u32 v0, v{vO}, v{vO+1}
        """)
        for nb in range(NB):
            gemm.bias_load(a, BI + 4 * nb, vO + 1, "s[60:63]", 72, nb)
            gemm.bias_load(a, BI + 12 + 4 * nb, vO, "s[8:11]", 56, nb)
        a("s_waitcnt vmcnt(0)")
        for nb in range(NB):
            oo = g.acc + 32 * nb
            gemm.add_bias(a, oo, BI + 4 * nb, g.sets + 2)
            gemm.add_bias(a, oo, BI + 12 + 4 * nb, g.sets + 2)
        BR = g.sets + 12
        a("s_setprio 3")
        for k in range(NR):
            for nb in range(NB):
                a(f"buffer_load_dwordx4 {vr(BR+4*(k*NB+nb),4)}, v{g.vB}, s[16:19], s74 offen offset:{1024*nb} sc1")
            a(f"s_add_u32 s74, s74, {20*1024}")
        a(f"""
        s_lshr_b32 s36, s50, 1
        s_lshl_b32 s37, s80, 1
        s_add_u32 s37, s37, s36
        s_mul_i32 s70, s37, {QBLK}
        s_xor_b32 s37, s37, 1
        s_mul_i32 s71, s37, {QBLK}
        s_mul_i32 s36, s50, {10*1024}
        s_add_u32 s36, s36, {WS_O}
        s_add_u32 s70, s70, s36
        s_add_u32 s71, s71, s36
        s_mul_i32 s58, s50, 20480
        v_and_b32 v{g.vT}, 31, v1
        v_lshlrev_b32 v{g.vA0}, 3, v{g.vT}
        v_lshrrev_b32 v{g.vT}, 5, v1
        v_lshl_add_u32 v{g.vA0}, v{g.vT}, 8, v{g.vA0}      ; hh*256 + m*8
        v_add_u32 v{g.vA0}, s58, v{g.vA0}
        v_add_u32 v{g.vA1}, s57, v{g.vL16}
        """)
        M.lds_wait(a, M.L_CNTO, 8, g.vRW - 1, 2)
        gate(2, False, int(os.environ.get('G2S', '2')))
        if 't' in ABL: a.ts_mark(1)
        a.vm_issued = 0
        tk = {}
        for q in range(3):
            for sl in range(2):
                a(f"s_add_u32 m0, s58, {sl*10240 + q*4096}")
                a("s_nop 0")
                for i in range(4):
                    k = 4 * q + i
                    if k < 10:
                        tk[(k, sl)] = a.vm(f"buffer_load_dwordx4 v{g.vL16}, s[16:19], s{70+sl} offen offset:{1024*i} sc1 lds")
                a(f"s_add_u32 s{70+sl}, s{70+sl}, 4096")
        AR = g.sets
        BS = [BR, BR + 12] if NB == 3 else [BR + 8, BR + 16]
        lt = {}
        a.lg_issued = 0
        def rdA(f):
            k, sl = f // 2, f % 2
            A = AR + 4 * (f % 3)
            a.wait_vm(tk[(k, sl)])
            a.lg(f"ds_read_b64 {vr(A,2)}, v{g.vA0} offset:{sl*10240+k*1024}")
            lt[f] = a.lg(f"ds_read_b64 {vr(A+2,2)}, v{g.vA0} offset:{sl*10240+k*1024+512}")
        def rdB(k):
            for nb in range(NB):
                lt[('b', k)] = a.lg(f"ds_read_b128 {vr(BS[k%2]+4*nb,4)}, v{g.vA1} offset:{((k-NR)*NB+nb)*1024}")
        rdA(0); rdA(1)
        if 't' in ABL: a.ts_mark(2)
        for f in range(20):
            k, sl = f // 2, f % 2
            need = lt[f]
            if k >= NR: need = max(need, lt[('b', k)])
            a.wait_lg(need)
            A = AR + 4 * (f % 3)
            Bk = BR + 4 * NB * k if k < NR else BS[k % 2]
            for nb in range(NB):
                d = g.acc + 32 * nb + 16 * sl
                a(f"v_mfma_f32_32x32x16_bf16 {vr(d,16)}, {vr(Bk+4*nb,4)}, {vr(A,4)}, {vr(d,16)}")
                if nb == 0:
                    if sl == 0 and NR <= k + 1 < 10: rdB(k + 1)
                    if f + 2 < 20: rdA(f + 2)
        if 't' in ABL: a.ts_mark(3)
        if 't' in ABL: a.ts_mark(4)
        gemm.reduce(a, g, NB, 50)
        if 't' in ABL: a.ts_mark(5)
        for nb in range(NB):
            oo = g.acc + 32 * nb
            gemm.pack8(a, oo, oo + 16)
            a("s_nop 1")
            a(f"v_permlane32_swap_b32 v{oo+16}, v{oo+18}")
            a(f"v_permlane32_swap_b32 v{oo+17}, v{oo+19}")
            a(f"buffer_store_dwordx4 {vr(oo+16,4)}, v0, s[64:67], s56 offen offset:{64*nb} nt")
        a.exit(0)
```
